```python
import torch

def _softmax(x, axis=-1):
    return torch.softmax(x, dim=axis)
def _gelu(x):
    return torch.nn.functional.gelu(x, approximate="tanh")
def _silu(x):
    return torch.nn.functional.silu(x)
def _sigmoid(x):
    return torch.sigmoid(x)
def _layernorm(x, axis=-1, eps=1e-5):
    m = x.mean(dim=axis, keepdim=True)
    v = x.var(dim=axis, keepdim=True, unbiased=False)
    return (x - m) / torch.sqrt(v + eps)
def _scatter_add(tgt, idx, src, axis=0):
    return tgt.clone().index_add_(axis, idx, src)
def _segment_sum(src, seg, n):
    out = torch.zeros((n,) + src.shape[1:], dtype=src.dtype)
    return out.index_add_(0, seg, src)
def _pad(x, pw):
    flat = tuple(v for pair in reversed(pw) for v in pair)
    return torch.nn.functional.pad(x, flat)

kernel_name = 'sequential_preLN__sliding_block__moe_arch_mod__prompt'

def setup_inputs():

    _w = (lambda a: (lambda t: t.to(torch.bfloat16) if t.is_floating_point() else t)(torch.as_tensor(a)))
    def _A_setup():
        B, S, D = 1, 2048, 1024
        return {
            "x": _w((lambda *s: torch.randn(*s, dtype=torch.bfloat16) * 0.05)(B, S, D)),
            "wqkv": _w((lambda *s: torch.randn(*s, dtype=torch.bfloat16) * 0.05)(D, 3 * D)),
            "wo": _w((lambda *s: torch.randn(*s, dtype=torch.bfloat16) * 0.05)(D, D)),
        }
    _A_in = _A_setup()

    def _B_setup():
        B, S, D, F, C = 1, 2048, 1024, 3584, 2
        return {
            "x": _w((lambda *s: torch.randn(*s, dtype=torch.bfloat16) * 0.05)(B, S, D)),
            "w_r": _w((lambda *s: torch.randn(*s, dtype=torch.bfloat16) * 0.05)(D)),
            "w_gate": _w((lambda *s: torch.randn(*s, dtype=torch.bfloat16) * 0.05)(D, F)),
            "w_up": _w((lambda *s: torch.randn(*s, dtype=torch.bfloat16) * 0.05)(D, F)),
            "w_down": _w((lambda *s: torch.randn(*s, dtype=torch.bfloat16) * 0.05)(F, D)),
        }
    _B_in = _B_setup()

    return {
        "A_x": _A_in["x"],
        "A_wqkv": _A_in["wqkv"],
        "A_wo": _A_in["wo"],
        "B_x": _B_in["x"],
        "B_w_r": _B_in["w_r"],
        "B_w_gate": _B_in["w_gate"],
        "B_w_up": _B_in["w_up"],
        "B_w_down": _B_in["w_down"],
    }

def reference(A_x, A_wqkv, A_wo, B_x, B_w_r, B_w_gate, B_w_up, B_w_down):
    def _A_ref(x, wqkv, wo):
        B, S, D = x.shape
        H = 32; Dh = D // H; W = 256
        qkv = (lambda x, *d: x.permute(*d))((x @ wqkv).reshape(B, S, 3, H, Dh), 2, 0, 3, 1, 4)
        q, k, v = qkv[0], qkv[1], qkv[2]
        scores = torch.einsum("bhqd,bhkd->bhqk", q, k) * (Dh ** -0.5)
        idx = torch.arange(S)
        mask = (idx[:, None] - idx[None, :] >= 0) & (idx[:, None] - idx[None, :] < W)
        scores = torch.where(mask[None, None], scores, -1e9)
        p = _softmax(scores, axis=-1)
        o = torch.einsum("bhqk,bhkd->bhqd", p, v)
        return (lambda x, *d: x.permute(*d))(o, 0, 2, 1, 3).reshape(B, S, D) @ wo

    def _B_ref(x, w_r, w_gate, w_up, w_down):
        B, S, D = x.shape
        C = 2
        r = x @ w_r
        idx = torch.argsort(-r, axis=-1)[:, :C]
        idx_e = (lambda x, n, axis: torch.repeat_interleave(x, n, dim=axis))(idx.reshape(B, C, 1), D, axis=2)
        x_sel = (lambda x, i, axis: torch.take_along_dim(x, i, dim=axis))(x, idx_e, axis=1)
        g = _silu(x_sel @ w_gate)
        u = x_sel @ w_up
        y = (g * u) @ w_down
        r_sel = _sigmoid((lambda x, i, axis: torch.take_along_dim(x, i, dim=axis))(r, idx, axis=1))
        y = y * r_sel.reshape(B, C, 1)
        b_off = (torch.arange(B) * S).reshape(B, 1)
        flat_idx = (idx + b_off).reshape(B * C)
        zero = (x * 0.0).reshape(B * S, D)
        upd = _scatter_add(zero, flat_idx, y.reshape(B * C, D), axis=0)
        return x + upd.reshape(B, S, D)

    x = A_x
    h = x + _A_ref(_layernorm(x, axis=-1), A_wqkv, A_wo)
    h2 = h + _B_ref(_layernorm(h, axis=-1), B_w_r, B_w_gate, B_w_up, B_w_down)
    return h2
```

```python
import re, sys

def v(n, c=1):
    return f"v{n}" if c == 1 else f"v[{n}:{n+c-1}]"
def s(n, c=1):
    return f"s{n}" if c == 1 else f"s[{n}:{n+c-1}]"

class Asm:
    def __init__(self):
        self.lines = []
        self.uid = 0
    def __call__(self, text):
        for ln in text.split("\n"):
            ln = ln.strip()
            if ln:
                self.lines.append(ln)
    def label(self, name):
        self.lines.append(name + ":")
    def newlabel(self, base):
        self.uid += 1
        return f"{base}_{self.uid}"
    def nop(self, n):
        while n > 0:
            k = min(n, 16)
            self.lines.append(f"s_nop {k-1}")
            n -= k
    def text(self):
        out = []
        for ln in self.lines:
            if ln.endswith(":") or ln.startswith(".") :
                out.append(ln)
            else:
                out.append("    " + ln)
        return "\n".join(out) + "\n"

REG = re.compile(r"^(-|\|)?(abs\()?([vsa])(\d+)\)?\|?$")
RNG = re.compile(r"^(-)?([vsa])\[(\d+):(\d+)\]$")

def regs_of(op):
    op = op.strip()
    m = RNG.match(op)
    if m:
        return [(m.group(2), i) for i in range(int(m.group(3)), int(m.group(4)) + 1)]
    m = REG.match(op)
    if m:
        return [(m.group(3), int(m.group(4)))]
    if op == "vcc":
        return [("s", "vcc")]
    if op in ("vcc_lo", "vcc_hi"):
        return [("s", "vcc")]
    if op == "exec":
        return [("s", "exec")]
    if op == "m0":
        return [("s", "m0")]
    return []

TRANS = ("v_exp_f32", "v_log_f32", "v_rcp_f32", "v_rsq_f32", "v_sqrt_f32", "v_sin_f32", "v_cos_f32", "v_rcp_iflag_f32")

class Ins:
    __slots__ = ("text", "op", "ops", "mods", "dst", "src", "kind", "passes", "line", "cdst", "srcC", "srcAB", "addr_s", "wide_data", "is_dpp", "ldsdma")
    def __init__(self, text, line):
        self.text = text; self.line = line
        t = text.split(";")[0].strip()
        parts = t.split(None, 1)
        self.op = parts[0]
        rest = parts[1] if len(parts) > 1 else ""
        toks = [x.strip() for x in re.split(r",(?![^\[]*\])", rest)] if rest else []
        mods = []
        if toks:
            last = toks[-1].split()
            if len(last) > 1:
                toks[-1] = last[0]; mods = last[1:]
        self.ops = toks; self.mods = mods
        self.dst = []; self.src = []; self.srcC = []; self.srcAB = []; self.addr_s = []; self.wide_data = []
        self.passes = 0; self.is_dpp = False; self.ldsdma = False
        op = self.op
        R = regs_of
        modtxt = " ".join(mods)
        if op.startswith("v_mfma"):
            self.kind = "mfma"
            self.passes = 8 if "32x32" in op else 4
            self.dst = R(toks[0]); self.srcAB = R(toks[1]) + R(toks[2]); self.srcC = R(toks[3])
            self.src = self.srcAB + self.srcC
        elif op.startswith("v_"):
            self.kind = "valu"
            self.is_dpp = any(k in modtxt for k in ("row_", "quad_perm", "wave_", "bcast", "mirror"))
            base = op.replace("_e32", "").replace("_e64", "").replace("_dpp", "")
            if base.startswith("v_cmp"):
                self.dst = R(toks[0]);
                for x in toks[1:]: self.src += R(x)
            elif base in ("v_add_co_u32", "v_sub_co_u32", "v_subrev_co_u32"):
                self.dst = R(toks[0]) + R(toks[1])
                for x in toks[2:]: self.src += R(x)
            elif base in ("v_addc_co_u32", "v_subb_co_u32"):
                self.dst = R(toks[0]) + R(toks[1])
                for x in toks[2:]: self.src += R(x)
            elif base.startswith("v_permlane") and "swap" in base:
                self.dst = R(toks[0]) + R(toks[1]); self.src = R(toks[0]) + R(toks[1])
            else:
                self.dst = R(toks[0])
                for x in toks[1:]: self.src += R(x)
                if base.startswith("v_fmac") or base.startswith("v_dot2c") or base.startswith("v_pk_fmac") or base == "v_writelane_b32" or self.is_dpp:
                    self.src += self.dst
                if base == "v_cndmask_b32" and len(toks) == 3:
                    self.src += [("s", "vcc")]
        elif op.startswith("ds_"):
            self.kind = "ds"
            if op.startswith("ds_read") or op.startswith("ds_bpermute") or op.startswith("ds_permute") or op.startswith("ds_swizzle") or "_rtn" in op:
                self.dst = R(toks[0])
                for x in toks[1:]: self.src += R(x)
            else:
                for x in toks: self.src += R(x)
        elif op.startswith("buffer_") or op.startswith("global_") :
            self.kind = "vmem"
            lds = ("lds" in mods) or ("_lds_" in op)
            self.ldsdma = lds
            if op.startswith("buffer_inv") or op.startswith("buffer_wbl2"):
                pass
            elif op.startswith("buffer_load"):
                if lds:
                    for x in toks: self.src += R(x)
                else:
                    self.dst = R(toks[0])
                    for x in toks[1:]: self.src += R(x)
            elif op.startswith("buffer_store"):
                for x in toks: self.src += R(x)
                if "x4" in op or "x3" in op: self.wide_data = R(toks[0])
            elif op.startswith("buffer_atomic"):
                for x in toks: self.src += R(x)
                if "sc0" in mods: self.dst = R(toks[0])
            elif op.startswith("global_load"):
                if lds:
                    for x in toks: self.src += R(x)
                else:
                    self.dst = R(toks[0])
                    for x in toks[1:]: self.src += R(x)
            elif op.startswith("global_store"):
                for x in toks: self.src += R(x)
                if "x4" in op or "x3" in op: self.wide_data = R(toks[1])
            elif op.startswith("global_atomic"):
                if "sc0" in mods:
                    self.dst = R(toks[0])
                    for x in toks[1:]: self.src += R(x)
                else:
                    for x in toks: self.src += R(x)
            self.addr_s = [r for r in self.src if r[0] == "s"]
        elif op.startswith("s_"):
            self.kind = "salu"
            if op.startswith("s_load") or op.startswith("s_memtime") or op.startswith("s_memrealtime") or op.startswith("s_buffer_load"):
                self.kind = "smem"
                self.dst = R(toks[0])
                for x in toks[1:]: self.src += R(x)
            elif op.startswith("s_cmp") or op.startswith("s_bitcmp") or op in ("s_waitcnt", "s_barrier", "s_nop", "s_endpgm", "s_setprio", "s_sleep", "s_branch") or op.startswith("s_cbranch"):
                for x in toks: self.src += R(x)
            else:
                self.dst = R(toks[0]) if toks else []
                for x in toks[1:]: self.src += R(x)
                if "saveexec" in op:
                    self.dst += [("s", "exec")]; self.src += [("s", "exec")]
                if op.startswith("s_addk") or op.startswith("s_mulk"):
                    self.src += self.dst
        else:
            self.kind = "other"

def waitstates(ins):
    if ins.op == "s_nop":
        return int(ins.ops[0], 0) + 1
    return 1

def check(asm, entries, max_visits=3, verbose=True):
    prog = []; labels = {}
    for i, ln in enumerate(asm.lines):
        t = ln.split(";")[0].strip()
        if not t or t.startswith("."):
            if t.endswith(":"): labels[t[:-1]] = len(prog)
            continue
        if t.endswith(":"):
            labels[t[:-1]] = len(prog); continue
        prog.append(Ins(t, i))
    errs = {}
    def err(ins, msg):
        key = (ins.line, msg)
        if key not in errs:
            errs[key] = f"line {ins.line}: {ins.text}   <-- {msg}"
    sys.setrecursionlimit(100000)
    visits = {}
    stack = [(labels[e], (), (), ()) for e in entries]
    while stack:
        pc, hist, vmq, lgq = stack.pop()
        hist = list(hist); vmq = list(vmq); lgq = list(lgq)
        while pc < len(prog):
            ins = prog[pc]
            key = pc
            sig = (tuple((h[0].line, h[1]) for h in hist[-6:]), tuple(tuple(x[1]) for x in vmq), tuple(tuple(x[1]) for x in lgq))
            vs = visits.setdefault(key, set())
            if sig in vs or len(vs) >= max_visits:
                break
            vs.add(sig)
            src = set(ins.src); dst = set(ins.dst)
            for (p, d) in hist:
                pd = set(p.dst)
                if p.kind == "valu":
                    pv = {r for r in pd if r[0] == "v"}; ps = {r for r in pd if r[0] == "s"}
                    if ins.kind == "mfma" and pv & src and d < 2: err(ins, f"VALU->MFMA needs 2 (have {d}) from line {p.line}: {p.text}")
                    if ins.kind == "vmem" and ps & set(ins.addr_s) and d < 5: err(ins, f"VALU sgpr->VMEM needs 5 (have {d}) from {p.text}")
                    if ins.kind == "valu" and ps & src and d < 2 and not ins.op.startswith("v_addc") : err(ins, f"VALU sgpr->VALU const needs 2 (have {d}) from {p.text}")
                    if ins.kind == "valu" and (ins.op.startswith("v_readfirstlane") or ins.op.startswith("v_readlane")) and pv & src and d < 1: err(ins, f"VALU->readlane needs 1 from {p.text}")
                    if ins.kind == "valu" and (ins.op.startswith("v_readlane") or ins.op.startswith("v_writelane")) and ps & src and d < 4: err(ins, f"VALU sgpr->lane select needs 4 from {p.text}")
                    if ins.kind == "valu" and ins.op.startswith("v_permlane") and pv & src and d < 2: err(ins, f"VALU->permlane needs 2 (have {d}) from {p.text}")
                    if ins.kind == "valu" and ins.is_dpp and pv & src and d < 2: err(ins, f"VALU->DPP needs 2 (have {d}) from {p.text}")
                    if p.op.replace("_e32","").replace("_e64","") in TRANS and ins.kind == "valu" and ins.op.replace("_e32","").replace("_e64","") not in TRANS and pv & src and d < 1: err(ins, f"trans->VALU needs 1 from {p.text}")
                    if ("op_sel" in " ".join(p.mods) and not p.op.startswith("v_pk_")) or "sdwa" in p.op or "dst_sel" in " ".join(p.mods):
                        if ins.kind == "valu" and pv & (src | dst) and d < 1: err(ins, f"opsel/sdwa->VALU needs 1 from {p.text}")
                if p.kind == "mfma":
                    n12 = 12 if p.passes == 8 else 8
                    n10 = 10 if p.passes == 8 else 6
                    n7 = 7 if p.passes == 8 else 3
                    if ins.kind == "mfma":
                        if pd & set(ins.srcAB) and d < n12: err(ins, f"MFMA D->AB needs {n12} (have {d}) from {p.text}")
                        if pd & set(ins.srcC):
                            if not (pd == set(ins.srcC) and p.passes == ins.passes):
                                if d < n10: err(ins, f"MFMA D->C overlap needs {n10} (have {d}) from {p.text}")
                        if pd & dst and not (pd == dst):
                            if d < n10: err(ins, f"MFMA D->D partial overlap (have {d}) from {p.text}")
                        if pd == dst and set(ins.srcC) != pd and d < n10:
                            err(ins, f"MFMA WAW same D different C (have {d}) from {p.text} [check]")
                    elif ins.kind in ("valu", "ds", "vmem"):
                        if pd & (src | dst) and d < n12: err(ins, f"MFMA D->{ins.kind} needs {n12} (have {d}) from {p.text}")
                    if ins.kind == "valu" and set(p.srcC) & dst and d < n7: err(ins, f"MFMA srcC WAR needs {n7} (have {d}) from {p.text}")
                if p.kind == "salu" and ("s", "m0") in pd and ins.kind == "vmem" and ins.ldsdma and d < 1: err(ins, "m0->ldsdma needs 1")
                if p.kind == "vmem" and p.wide_data and ins.kind == "valu" and set(p.wide_data) & dst and d < 2: err(ins, f"wide store WAR needs 2 from {p.text}")
            if ins.op == "s_waitcnt":
                txt = ins.text
                m = re.search(r"vmcnt\((\d+)\)", txt)
                if m:
                    n = int(m.group(1))
                    while len(vmq) > n: vmq.pop(0)
                m = re.search(r"lgkmcnt\((\d+)\)", txt)
                if m:
                    n = int(m.group(1))
                    if n == 0:
                        lgq = []
                    else:
                        lds = [x for x in lgq if x[0].kind != "smem"]
                        sm = [x for x in lgq if x[0].kind == "smem"]
                        while len(lds) > n: lds.pop(0)
                        lgq = sm + lds
            else:
                touched = src | dst
                for (p, regs) in vmq:
                    if regs and set(regs) & touched and not (ins.kind == "vmem" and not (set(regs) & src)):
                        err(ins, f"uses reg of outstanding VMEM load {p.text}")
                for (p, regs) in lgq:
                    if regs and set(regs) & touched:
                        err(ins, f"uses reg of outstanding LDS/SMEM load {p.text}")
            if ins.kind == "vmem": vmq.append((ins, tuple(ins.dst)))
            if ins.kind == "ds": lgq.append((ins, tuple(ins.dst)))
            if ins.kind == "smem": lgq.append((ins, tuple(ins.dst)))
            if len(vmq) > 63: err(ins, "more than 63 VMEM outstanding (vmcnt saturates)")
            w = waitstates(ins)
            hist = [(p, d + w) for (p, d) in hist if d + w < 20]
            if ins.kind in ("valu", "mfma", "salu", "vmem"):
                hist.append((ins, 0))
            if ins.op == "s_endpgm": break
            if ins.op == "s_branch":
                pc = labels[ins.ops[0]]; continue
            if ins.op.startswith("s_cbranch"):
                stack.append((labels[ins.ops[0]], tuple(hist), tuple(vmq), tuple(lgq)))
            pc += 1
    if verbose:
        for k in sorted(errs): print("HAZARD:", errs[k])
    return list(errs.values())
```

```python
import sys
from asmdsl import Asm, v, s, check

KNAME = "sequential_preLN__sliding_block__moe_arch_mod__prompt_kernel"

WS_KV   = 0
WS_O    = 8 << 20
WS_OB   = 12 << 20
WS_ST1  = 16 << 20
WS_CSP  = (16 << 20) + 65536
WS_TS   = 20 << 20
WS_DBG  = 24 << 20
WS_SIZE = 256 << 20
OB_YP, OB_PST, OB_CLN, OB_CBASE, OB_GR, OB_KVF, OB_OF, OB_END = 0, 8192, 9216, 9728, 10752, 10880, 11008, 12288

LDS_BYTES = 163840
SLOT = 40960; XT = 0; WT = 16384
A_OWN = 40960; A_Q = 73728; A_N1 = 90112; A_N2 = 122880
LSM = 155648
L_MEAN = 0; L_RSTD = 512; L_CS = 1024; L_CSP = 1792; L_CNT = 4864

S_X, S_WQ, S_WS, S_OUT, S_AUX = 4, 8, 12, 16, 20
S_DBG = 24
S_RB, S_HP, S_W, S_W4 = 26, 27, 28, 29
S_T0, S_T1, S_T2, S_T3 = 30, 31, 32, 33
S_PID = 34
S_SX, S_SW, S_SIG, S_BX, S_BW = 35, 36, 37, 38, 39
S_M0X, S_M0W = 40, 43
S_EX = 46
S_A, S_B, S_C, S_D = 48, 49, 50, 51
S_M = 52
S_ERR = 54
S_STAMP = 64
NSTAMP = 16

class Opt:
    def __init__(self, **kw):
        self.stamps = 0
        self.stop = 99
        self.dump = 0
        self.__dict__.update(kw)

def stamp(a, o, idx):
    if o.stamps:
        a(f"s_memrealtime {s(S_STAMP+2*idx,2)}")

SPIN = 400000

def prologue(a, o):
    a(f"""
    s_cmp_ge_u32 s2, 256
    s_cbranch_scc1 L_end
    """)
    stamp(a, o, 0)
    a(f"""
    s_load_dwordx2 {s(S_X,2)}, s[0:1], 0
    s_load_dwordx2 {s(S_WQ,2)}, s[0:1], 8
    s_load_dwordx2 {s(S_WS,2)}, s[0:1], 80
    s_load_dwordx2 {s(S_DBG,2)}, s[0:1], 72
    s_load_dwordx2 {s(S_OUT,2)}, s[0:1], 64
    v_lshrrev_b32 v2, 6, v0
    v_and_b32 v1, 63, v0
    v_readfirstlane_b32 {s(S_W)}, v2
    s_mov_b32 {s(S_X+2)}, {2048*1024*2}
    s_mov_b32 {s(S_X+3)}, 0x20000
    s_mov_b32 {s(S_WQ+2)}, {1024*3072*2}
    s_mov_b32 {s(S_WQ+3)}, 0x20000
    s_mov_b32 {s(S_WS+2)}, {WS_SIZE}
    s_mov_b32 {s(S_WS+3)}, 0x20000
    s_mov_b32 {s(S_OUT+2)}, {2048*1024*2}
    s_mov_b32 {s(S_OUT+3)}, 0x20000
    s_mov_b32 {s(S_ERR)}, 0
    s_and_b32 {s(S_T0)}, s2, 7
    s_lshr_b32 {s(S_T1)}, s2, 3
    s_and_b32 {s(S_RB)}, {s(S_T0)}, 1
    s_lshl_b32 {s(S_RB)}, {s(S_RB)}, 3
    s_and_b32 {s(S_T2)}, {s(S_T1)}, 7
    s_add_u32 {s(S_RB)}, {s(S_RB)}, {s(S_T2)}        ; rb = 8*(j&1) + (i&7)
    s_lshr_b32 {s(S_HP)}, {s(S_T0)}, 1
    s_lshl_b32 {s(S_HP)}, {s(S_HP)}, 2
    s_lshr_b32 {s(S_T2)}, {s(S_T1)}, 3
    s_add_u32 {s(S_HP)}, {s(S_HP)}, {s(S_T2)}        ; hp = 4*(j>>1) + (i>>3)
    s_lshl_b32 {s(S_PID)}, {s(S_RB)}, 4
    s_add_u32 {s(S_PID)}, {s(S_PID)}, {s(S_HP)}
    s_and_b32 {s(S_W4)}, {s(S_W)}, 3
    s_waitcnt lgkmcnt(0)
    s_cmp_ge_u32 {s(S_W)}, 4
    s_cbranch_scc1 L_g1_loader
    """)

V_XA = 8
V_WA = 20
V_FR = 64
V_ACC = 128
def acc(b, j): return V_ACC + 16*(3*b + j)
def frX(p, b): return V_FR + 20*p + 4*b
def frW(p, j): return V_FR + 20*p + 8 + 4*j

def g1_reads(p, slot, t):
    r = []
    r.append(f"ds_read_b128 {v(frX(p,0),4)}, {v(V_XA+4*slot+t)}")
    for u in range(2):
        r.append(f"ds_read_b64_tr_b16 {v(frW(p,0)+2*u,2)}, {v(V_WA+slot)} offset:{(16*t+4*u)*384}")
    r.append(f"ds_read_b128 {v(frX(p,1),4)}, {v(V_XA+4*slot+t)} offset:4096")
    for j in (1, 2):
        for u in range(2):
            r.append(f"ds_read_b64_tr_b16 {v(frW(p,j)+2*u,2)}, {v(V_WA+slot)} offset:{(16*t+4*u)*384 + 128*j}")
    return r

def g1_mfmas(p, first=False):
    m = []
    for (b, j) in ((0,0),(1,0),(0,1),(1,1),(0,2),(1,2)):
        c = "0" if first else v(acc(b,j),16)
        if j < 2:
            m.append(f"v_mfma_f32_32x32x16_bf16 {v(acc(b,j),16)}, {v(frW(p,j),4)}, {v(frX(p,b),4)}, {c}")
        else:
            m.append(f"v_mfma_f32_32x32x16_bf16 {v(acc(b,j),16)}, {v(frX(p,b),4)}, {v(frW(p,j),4)}, {c}")
    return m

def g1_compute(a, o):
    a(f"""
    s_lshl_b32 {s(S_A)}, {s(S_PID)}, 14
    s_mul_i32 {s(S_T1)}, {s(S_W4)}, 3072
    s_add_u32 {s(S_A)}, {s(S_A)}, {s(S_T1)}
    s_add_u32 {s(S_A)}, {s(S_A)}, {WS_OB}
    v_lshlrev_b32 v24, 4, v1
    v_mov_b32 v4, -1
    v_mov_b32 v5, -1
    v_mov_b32 v6, -1
    v_mov_b32 v7, -1
    """)
    a(f"""
    v_and_b32 v2, 31, v1                 ; r = lane&31
    v_lshrrev_b32 v3, 5, v1              ; hi
    v_lshrrev_b32 v25, 1, v2
    v_and_b32 v25, 7, v25                ; swz = (r>>1)&7
    s_and_b32 {s(S_T0)}, {s(S_W4)}, 1
    s_lshl_b32 {s(S_T0)}, {s(S_T0)}, 13  ; rh*64*128
    v_lshlrev_b32 v26, 7, v2
    v_add_u32 v26, {s(S_T0)}, v26
    """)
    for t in range(4):
        a(f"""
        v_add_u32 v27, {2*t}, v3
        v_xor_b32 v27, v27, v25
        v_lshl_add_u32 {v(V_XA+t)}, v27, 4, v26
        v_add_u32 {v(V_XA+4+t)}, {SLOT}, {v(V_XA+t)}
        v_add_u32 {v(V_XA+8+t)}, {2*SLOT}, {v(V_XA+t)}
        """)
    a(f"""
    v_lshrrev_b32 v25, 4, v1             ; g
    v_and_b32 v26, 1, v25                ; g&1
    v_and_b32 v27, 15, v1
    v_lshrrev_b32 v28, 2, v27            ; r4
    v_lshrrev_b32 v29, 1, v28            ; r4>>1
    v_lshl_add_u32 v28, v3, 3, v28       ; 8*hi + r4
    v_mul_u32_u24 v28, 384, v28
    s_lshr_b32 {s(S_T0)}, {s(S_W4)}, 1   ; hh
    v_xor_b32 v29, {s(S_T0)}, v29
    v_lshl_add_u32 v28, v29, 6, v28
    v_and_b32 v27, 3, v1                 ; cq
    v_lshlrev_b32 v27, 3, v27
    v_lshl_add_u32 v27, v26, 5, v27
    v_add_u32 v28, v28, v27
    v_add_u32 {v(V_WA)}, {WT}, v28
    v_add_u32 {v(V_WA+1)}, {WT+SLOT}, v28
    v_add_u32 {v(V_WA+2)}, {WT+2*SLOT}, v28
    s_setprio 1
    s_barrier
    """)
    stamp(a, o, 1)
    for r in g1_reads(0, 0, 0): a(r)
    NST = 16
    for st in range(NST):
        slot = st % 3
        for t in range(4):
            p = t & 1
            if st == 4 and t == 3:
                a("s_waitcnt vmcnt(0) lgkmcnt(0)")
            else:
                a("s_waitcnt lgkmcnt(0)")
            if st == 1 and t == 1:
                for k in range(3):
                    off = f" offset:{1024*k}" if k else ""
                    a(f"buffer_store_dwordx4 v[4:7], v24, {s(S_WS,4)}, {s(S_A)} offen{off} sc1")
            ms = g1_mfmas(p, first=(st == 0 and t == 0))
            if t < 3:
                rd = g1_reads(1-p, slot, t+1)
                a(ms[0]); [a(x) for x in rd[0:3]]
                a(ms[1]); [a(x) for x in rd[3:6]]
                a(ms[2]); [a(x) for x in rd[6:8]]
                a(ms[3]); a(ms[4]); a(ms[5])
            else:
                if st < NST-1:
                    rd = g1_reads(1-p, (st+1) % 3, 0)
                    a(ms[0]); a(ms[1])
                    a("s_barrier")
                    [a(x) for x in rd[0:3]]
                    a(ms[2]); [a(x) for x in rd[3:6]]
                    a(ms[3]); [a(x) for x in rd[6:8]]
                    a(ms[4]); a(ms[5])
                else:
                    for x in ms: a(x)
    a("s_setprio 0")
    stamp(a, o, 2)

QSCALE = 0.17677669529663687 * 1.4426950408889634
import struct
def fbits(x): return "0x%08x" % struct.unpack("<I", struct.pack("<f", x))[0]

def g1_epilogue(a, o):
    CSQ, CSK = 24, 40
    CSV = 56
    MR = 58
    TM, TR = 64, 80
    PK = 96
    a(f"""
    v_and_b32 v2, 31, v1
    v_lshrrev_b32 v3, 5, v1
    s_and_b32 {s(S_A)}, {s(S_W4)}, 1          ; rh
    s_lshr_b32 {s(S_B)}, {s(S_W4)}, 1         ; hh
    s_lshl_b32 {s(S_T0)}, {s(S_A)}, 8         ; rh*64*4
    v_lshl_add_u32 v4, v2, 2, {s(S_T0)}       ; (64rh + l31)*4
    s_lshl_b32 {s(S_T1)}, {s(S_B)}, 7         ; hh*32*4
    v_lshl_add_u32 v5, v3, 4, {s(S_T1)}
    v_lshl_add_u32 v6, v2, 2, {s(S_T1)}       ; hh*128 + l31*4
    v_lshl_add_u32 v7, v3, 4, {s(S_T0)}
    v_add_u32 v4, {LSM}, v4
    v_add_u32 v5, {LSM}, v5
    v_add_u32 v6, {LSM}, v6
    v_add_u32 v7, {LSM}, v7
    ds_read_b32 {v(MR)}, v4 offset:{L_MEAN}
    ds_read_b32 {v(MR+1)}, v4 offset:{L_RSTD}
    ds_read_b32 {v(MR+2)}, v4 offset:{L_MEAN+128}
    ds_read_b32 {v(MR+3)}, v4 offset:{L_RSTD+128}
    ds_read_b32 {v(CSV)}, v6 offset:{L_CS+512}
    """)
    for q in range(4):
        a(f"ds_read_b128 {v(CSQ+4*q,4)}, v5 offset:{L_CS+32*q}")
        a(f"ds_read_b128 {v(CSK+4*q,4)}, v5 offset:{L_CS+256+32*q}")
    a(f"""
    v_lshlrev_b32 v8, 4, v1                   ; lane*16
    s_lshl_b32 {s(S_T0)}, {s(S_B)}, 14        ; hh*16KB
    s_lshl_b32 {s(S_T1)}, {s(S_A)}, 12
    s_add_u32 {s(S_T0)}, {s(S_T0)}, {s(S_T1)}
    v_add_u32 v9, {s(S_T0)}, v8
    s_lshl_b32 {s(S_T2)}, {s(S_PID)}, 15
    s_add_u32 {s(S_C)}, {s(S_T2)}, {WS_KV}
    s_add_u32 {s(S_D)}, {s(S_C)}, 8192
    s_lshl_b32 {s(S_T0)}, {s(S_B)}, 13        ; hh*8KB
    s_add_u32 {s(S_T0)}, {s(S_T0)}, {s(S_T1)}
    v_add_u32 v10, {s(S_T0)}, v8
    v_add_u32 v10, {A_Q}, v10
    s_waitcnt lgkmcnt(0)
    v_sub_f32 {v(MR)}, 0, {v(MR)}
    v_sub_f32 {v(MR+2)}, 0, {v(MR+2)}
    v_sub_f32 {v(CSV)}, 0, {v(CSV)}
    v_mov_b32 {v(MR+4)}, 0
    v_mul_f32 {v(MR+5)}, {fbits(QSCALE)}, {v(MR+1)}
    v_mul_f32 {v(MR+7)}, {fbits(QSCALE)}, {v(MR+3)}
    """)
    TM, TR = 68, 84
    PKA, PKB = 100, 108
    def norm_T(b, j, cs, scale_reg_pair, pk):
        A = acc(b, j); mr = MR + 2*b
        for q in range(8):
            a(f"v_pk_fma_f32 {v(A+2*q,2)}, {v(cs+2*q,2)}, {v(mr,2)}, {v(A+2*q,2)} op_sel:[0,0,0] op_sel_hi:[1,0,1]")
        for q in range(8):
            a(f"v_pk_mul_f32 {v(A+2*q,2)}, {v(A+2*q,2)}, {v(scale_reg_pair,2)} op_sel:[0,1] op_sel_hi:[1,1]")
        for q in range(8):
            a(f"v_cvt_pk_bf16_f32 {v(pk+q)}, {v(A+2*q)}, {v(A+2*q+1)}")
    def load_tok(b):
        for q in range(4):
            a(f"ds_read_b128 {v(TM+4*q,4)}, v7 offset:{L_MEAN+128*b+32*q}")
            a(f"ds_read_b128 {v(TR+4*q,4)}, v7 offset:{L_RSTD+128*b+32*q}")
    def norm_V(b, pk):
        A = acc(b, 2)
        for q in range(8):
            a(f"v_pk_fma_f32 {v(A+2*q,2)}, {v(TM+2*q,2)}, {v(CSV,2)}, {v(A+2*q,2)} op_sel:[0,0,0] op_sel_hi:[1,0,1]")
        for q in range(8):
            a(f"v_pk_mul_f32 {v(A+2*q,2)}, {v(A+2*q,2)}, {v(TR+2*q,2)}")
        for q in range(8):
            a(f"v_cvt_pk_bf16_f32 {v(pk+q)}, {v(A+2*q)}, {v(A+2*q+1)}")
    def put(pk, b, kind):
        for u in range(2):
            if kind == 2:
                a(f"ds_write_b128 v10, {v(pk+4*u,4)} offset:{b*2048 + u*1024}")
            else:
                a(f"ds_write_b128 v9, {v(pk+4*u,4)} offset:{A_OWN + kind*8192 + b*2048 + u*1024}")
                a(f"buffer_store_dwordx4 {v(pk+4*u,4)}, v9, {s(S_WS,4)}, {s(S_C if kind == 0 else S_D)} offen offset:{b*2048 + u*1024} sc1")
    load_tok(0)
    norm_T(0, 1, CSK, MR, PKA);        put(PKA, 0, 0)
    norm_T(1, 1, CSK, MR+2, PKB);      put(PKB, 1, 0)
    a("s_waitcnt lgkmcnt(4)")
    norm_V(0, PKA)
    load_tok(1)
    put(PKA, 0, 1)
    a("s_waitcnt lgkmcnt(2)")
    norm_V(1, PKB);                    put(PKB, 1, 1)
    norm_T(0, 0, CSQ, MR+4, PKA);      put(PKA, 0, 2)
    norm_T(1, 0, CSQ, MR+6, PKB);      put(PKB, 1, 2)
    a("s_waitcnt lgkmcnt(0)")

def g1_loader(a, o):
    a.label("L_g1_loader")
    VXO = 8; VWO = 12
    VST = 24
    VCS = 40
    VA = 64
    a(f"""
    v_lshrrev_b32 v2, 3, v1              ; lane>>3
    v_and_b32 v3, 7, v1                  ; p
    v_lshrrev_b32 v4, 4, v1              ; lane>>4
    v_xor_b32 v5, v3, v4
    v_xor_b32 v6, 4, v5
    v_lshlrev_b32 v7, 11, v2             ; row*2048
    v_lshl_add_u32 v5, v5, 4, v7
    v_lshl_add_u32 v6, v6, 4, v7
    """)
    for i in range(4):
        a(f"v_add_u32 {v(VXO+i)}, {8*i*2048 - i*1024}, {v(5 + (i&1))}")
    for i in range(6):
        a(f"""
        v_add_u32 v2, {64*i}, v1
        v_mul_u32_u24 v3, 171, v2
        v_lshrrev_b32 v3, 12, v3          ; row = j/24
        v_mul_u32_u24 v4, 24, v3
        v_sub_u32 v4, v2, v4              ; p
        v_lshrrev_b32 v5, 3, v4           ; seg
        v_and_b32 v4, 7, v4
        v_lshrrev_b32 v6, 1, v3
        v_and_b32 v6, 1, v6
        v_lshlrev_b32 v6, 2, v6
        v_xor_b32 v4, v4, v6
        v_mul_u32_u24 v3, 6144, v3
        v_lshl_add_u32 v3, v5, 11, v3
        v_lshl_add_u32 v3, v4, 4, v3
        v_subrev_u32 {v(VWO+i)}, {1024*(i&3)}, v3
        """)
    a(f"""
    s_lshl_b32 {s(S_T0)}, {s(S_RB)}, 7
    s_lshl_b32 {s(S_T1)}, {s(S_W4)}, 5
    s_add_u32 {s(S_T0)}, {s(S_T0)}, {s(S_T1)}
    s_lshl_b32 {s(S_BX)}, {s(S_T0)}, 11          ; (128rb+32lw)*2048
    s_mul_i32 {s(S_BW)}, {s(S_W4)}, {16*6144}
    s_lshl_b32 {s(S_T0)}, {s(S_HP)}, 7
    s_add_u32 {s(S_BW)}, {s(S_BW)}, {s(S_T0)}
    s_lshl_b32 {s(S_T0)}, {s(S_W4)}, 12
    s_mul_i32 {s(S_T1)}, {s(S_W4)}, 6144
    s_and_b32 {s(S_SIG)}, {s(S_RB)}, 7
    s_lshl_b32 {s(S_SIG)}, {s(S_SIG)}, 1         ; k rotation
    """)
    for sl in range(3):
        a(f"s_add_u32 {s(S_M0X+sl)}, {s(S_T0)}, {sl*SLOT + XT}")
        a(f"s_add_u32 {s(S_M0W+sl)}, {s(S_T1)}, {sl*SLOT + WT}")
    def issue(st):
        sl = st % 3
        a(f"""
        s_lshl_b32 {s(S_T0)}, {s(S_SIG)}, 7
        s_add_u32 {s(S_SX)}, {s(S_BX)}, {s(S_T0)}
        s_mul_i32 {s(S_T0)}, {s(S_SIG)}, {64*6144}
        s_add_u32 {s(S_SW)}, {s(S_BW)}, {s(S_T0)}
        s_mov_b32 m0, {s(S_M0X+sl)}
        s_add_u32 {s(S_SIG)}, {s(S_SIG)}, 1
        """)
        for i in range(4):
            off = f" offset:{1024*i}" if i else ""
            a(f"buffer_load_dwordx4 {v(VXO+i)}, {s(S_X,4)}, {s(S_SX)} offen{off} lds")
        a(f"s_mov_b32 m0, {s(S_M0W+sl)}")
        a(f"s_and_b32 {s(S_SIG)}, {s(S_SIG)}, 15")
        for i in range(6):
            if i == 4:
                a("s_add_u32 m0, m0, 0x1000")
                a("s_nop 0")
            off = f" offset:{1024*(i&3)}" if (i&3) else ""
            a(f"buffer_load_dwordx4 {v(VWO+i)}, {s(S_WQ,4)}, {s(S_SW)} offen{off} lds")
    issue(0); issue(1)
    def side_loads():
        a(f"""
        v_lshrrev_b32 v2, 5, v1
        v_and_b32 v3, 31, v1
        v_lshlrev_b32 v4, 11, v2
        v_lshl_add_u32 v4, v3, 4, v4
        s_lshl_b32 {s(S_T0)}, {s(S_RB)}, 7
        s_lshl_b32 {s(S_T1)}, {s(S_HP)}, 3
        s_add_u32 {s(S_T0)}, {s(S_T0)}, {s(S_T1)}
        s_lshl_b32 {s(S_T1)}, {s(S_W4)}, 1
        s_add_u32 {s(S_A)}, {s(S_T0)}, {s(S_T1)}
        s_lshl_b32 {s(S_T0)}, {s(S_A)}, 11
        """)
        for i in range(4):
            off = f" offset:{512*i}" if i else ""
            a(f"buffer_load_dwordx4 {v(VST+4*i,4)}, v4, {s(S_X,4)}, {s(S_T0)} offen{off}")
        a(f"""
        v_mul_u32_u24 v5, 6144, v2
        v_lshl_add_u32 v5, v3, 2, v5         ; hi*6144 + l31*4
        s_lshl_b32 {s(S_T0)}, {s(S_RB)}, 6
        s_lshl_b32 {s(S_T1)}, {s(S_W4)}, 4
        s_add_u32 {s(S_T0)}, {s(S_T0)}, {s(S_T1)}
        s_mul_i32 {s(S_T0)}, {s(S_T0)}, 6144
        s_lshl_b32 {s(S_T1)}, {s(S_HP)}, 7
        s_add_u32 {s(S_T0)}, {s(S_T0)}, {s(S_T1)}
        """)
        for i in range(8):
            for sg in range(3):
                off = f" offset:{2048*sg}" if sg == 1 else ""
                so = S_T0 if sg < 2 else S_T1
                if sg == 2:
                    a(f"s_add_u32 {s(S_T1)}, {s(S_T0)}, 4096")
                a(f"buffer_load_dword {v(VCS+3*i+sg)}, v5, {s(S_WQ,4)}, {s(so)} offen{off}")
            if i < 7:
                a(f"s_add_u32 {s(S_T0)}, {s(S_T0)}, {2*6144}")
    NS = 28
    a(f"""
    v_lshlrev_b32 v2, 2, v1
    v_add_u32 v2, {LSM + L_CNT}, v2
    v_mov_b32 v3, 0
    ds_write_b32 v2, v3
    s_waitcnt vmcnt(10) lgkmcnt(0)
    """)
    a("s_barrier")
    stamp(a, o, 1)
    NST = 16
    for st in range(NST-1):
        wait = None
        if st == 11:
            a(f"""
            v_lshlrev_b32 v2, 5, v1
            v_min_u32 v2, 224, v2
            global_load_dword {v(VA)}, v2, {s(S_DBG,2)} sc1
            """)
        if st == 12:
            a(f"""
            v_lshlrev_b32 v2, 4, v1
            s_lshl_b32 {s(S_T0)}, {s(S_RB)}, 10
            s_add_u32 {s(S_T0)}, {s(S_T0)}, {WS_ST1}
            buffer_load_dwordx4 {v(VA+4,4)}, v2, {s(S_WS,4)}, {s(S_T0)} offen sc1
            s_mul_i32 {s(S_T1)}, {s(S_W4)}, 192
            v_min_u32 v3, 47, v1
            v_lshl_add_u32 v3, v3, 2, {s(S_T1)}       ; column*4
            s_lshl_b32 {s(S_T0)}, {s(S_HP)}, 14
            s_add_u32 {s(S_T0)}, {s(S_T0)}, {WS_CSP}
            """)
            for i in range(16):
                off = f" offset:{1024*(i&3)}" if (i&3) else ""
                if i and (i & 3) == 0:
                    a(f"s_add_u32 {s(S_T0)}, {s(S_T0)}, 4096")
                a(f"buffer_load_dword {v(VA+8+i)}, v3, {s(S_WS,4)}, {s(S_T0)} offen{off} sc1")
        if st + 2 < NST:
            issue(st+2)
        if st == 1:
            side_loads()
            wait = NS + 10
        elif st == 3:
            g1_stats(a, o, VST, VA)
            wait = 11
        elif st == 4:
            g1_colsum(a, o, VCS, VA)
            wait = 10
        elif st == 5:
            lab = a.newlabel("L_csp")
            a(f"""
            s_cmp_lg_u32 {s(S_W4)}, 0
            s_cbranch_scc1 {lab}
            v_lshlrev_b32 v2, 2, v1
            v_add_u32 v3, {LSM}, v2
            """)
            for k in range(3):
                for w in range(4):
                    a(f"ds_read_b32 {v(VA+4*k+w)}, v3 offset:{L_CSP + 768*w + 256*k}")
            a(f"""
            s_lshl_b32 {s(S_T0)}, {s(S_HP)}, 4
            s_add_u32 {s(S_T0)}, {s(S_T0)}, {s(S_RB)}
            s_lshl_b32 {s(S_T0)}, {s(S_T0)}, 10
            s_add_u32 {s(S_T0)}, {s(S_T0)}, {WS_CSP}
            s_waitcnt lgkmcnt(0)
            """)
            for k in range(3):
                a(f"v_add_f32 {v(VA+4*k)}, {v(VA+4*k)}, {v(VA+4*k+1)}")
                a(f"v_add_f32 {v(VA+4*k+2)}, {v(VA+4*k+2)}, {v(VA+4*k+3)}")
                a(f"v_add_f32 {v(VA+4*k)}, {v(VA+4*k)}, {v(VA+4*k+2)}")
            for k in range(3):
                off = f" offset:{256*k}" if k else ""
                a(f"buffer_store_dword {v(VA+4*k)}, v2, {s(S_WS,4)}, {s(S_T0)} offen{off} sc1")
            a("s_waitcnt vmcnt(13)")
            a(f"s_branch {lab}_j")
            a.label(lab)
            a("s_waitcnt vmcnt(10)")
            a.label(lab + "_j")
            wait = -1
        elif st == 7:
            lab = a.newlabel("L_arr")
            a(f"""
            s_cmp_lg_u32 {s(S_W4)}, 0
            s_cbranch_scc1 {lab}
            s_and_b32 {s(S_T0)}, {s(S_PID)}, 7
            s_lshl_b32 {s(S_T0)}, {s(S_T0)}, 5
            v_mov_b32 v2, {s(S_T0)}
            v_mov_b32 v3, 1
            v_cmp_eq_u32 vcc, 0, v1
            s_and_saveexec_b64 {s(S_EX,2)}, vcc
            global_atomic_add v2, v3, {s(S_DBG,2)} sc1
            s_mov_b64 exec, {s(S_EX,2)}
            s_waitcnt vmcnt(11)
            s_branch {lab}_j
            """)
            a.label(lab)
            a("s_waitcnt vmcnt(10)")
            a.label(lab + "_j")
            wait = -1
        elif st == 11:
            lab = a.newlabel("L_chk")
            a(f"""
            s_waitcnt vmcnt(10)
            s_mov_b32 {s(S_A)}, {SPIN}
            """)
            a.label(lab)
            a(f"""
            v_cmp_ne_u32 vcc, 32, {v(VA)}
            s_cmp_eq_u64 vcc, 0
            s_cbranch_scc1 {lab}_ok
            s_sleep 2
            global_load_dword {v(VA)}, v2, {s(S_DBG,2)} sc1
            s_waitcnt vmcnt(0)
            s_sub_u32 {s(S_A)}, {s(S_A)}, 1
            s_cmp_lg_u32 {s(S_A)}, 0
            s_cbranch_scc1 {lab}
            s_mov_b32 {s(S_ERR)}, 1
            """)
            a.label(lab + "_ok")
            wait = -1
        elif st == 13:
            for i in range(1, 16):
                a(f"v_add_f32 {v(VA+8)}, {v(VA+8)}, {v(VA+8+i)}")
            lab = a.newlabel("L_stw")
            a(f"""
            v_add_u32 v3, {LSM}, v3
            v_cmp_gt_u32 vcc, 48, v1
            s_and_saveexec_b64 {s(S_EX,2)}, vcc
            ds_write_b32 v3, {v(VA+8)} offset:{L_CS}
            s_mov_b64 exec, {s(S_EX,2)}
            s_cmp_lg_u32 {s(S_W4)}, 0
            s_cbranch_scc1 {lab}
            v_lshlrev_b32 v2, 3, v1
            v_add_u32 v2, {LSM}, v2
            v_mov_b32 {v(VA+8)}, {v(VA+4)}
            v_mov_b32 {v(VA+9)}, {v(VA+6)}
            v_mov_b32 {v(VA+10)}, {v(VA+5)}
            v_mov_b32 {v(VA+11)}, {v(VA+7)}
            ds_write_b64 v2, {v(VA+8,2)} offset:{L_MEAN}
            ds_write_b64 v2, {v(VA+10,2)} offset:{L_RSTD}
            """)
            a.label(lab)
            a("s_waitcnt vmcnt(10) lgkmcnt(0)")
            wait = -1
        elif st + 2 < NST:
            wait = 10
        else:
            wait = 0
        if wait >= 0:
            a(f"s_waitcnt vmcnt({wait})")
        a("s_barrier")
    stamp(a, o, 2)
    a("s_branch L_g1_join")

def g1_stats(a, o, VST, VA):
    U = VA
    T = VA + 32
    for i in range(16):
        a(f"v_lshlrev_b32 {v(U+2*i)}, 16, {v(VST+i)}")
        a(f"v_and_b32 {v(U+2*i+1)}, 0xffff0000, {v(VST+i)}")
    a(f"v_pk_add_f32 {v(T,2)}, {v(U,2)}, {v(U+2,2)}")
    for i in range(2, 16):
        a(f"v_pk_add_f32 {v(T,2)}, {v(T,2)}, {v(U+2*i,2)}")
    a(f"v_add_f32 {v(T)}, {v(T)}, {v(T+1)}")
    half_reduce(a, T, T+2)
    a(f"v_mul_f32 {v(T)}, {fbits(1.0/1024)}, {v(T)}")
    a(f"v_sub_f32 {v(T+2)}, 0, {v(T)}")
    a("s_nop 0")
    for i in range(16):
        a(f"v_pk_add_f32 {v(U+2*i,2)}, {v(U+2*i,2)}, {v(T+2,2)} op_sel:[0,0] op_sel_hi:[1,0]")
    a(f"v_pk_mul_f32 {v(T+4,2)}, {v(U,2)}, {v(U,2)}")
    for i in range(1, 16):
        a(f"v_pk_fma_f32 {v(T+4,2)}, {v(U+2*i,2)}, {v(U+2*i,2)}, {v(T+4,2)}")
    a(f"v_add_f32 {v(T+4)}, {v(T+4)}, {v(T+5)}")
    half_reduce(a, T+4, T+2)
    a(f"""
    v_mov_b32 {v(T+2)}, {fbits(1e-5)}
    v_fmac_f32 {v(T+2)}, {fbits(1.0/1024)}, {v(T+4)}
    v_rsq_f32 {v(T+1)}, {v(T+2)}
    v_lshrrev_b32 v2, 5, v1
    s_lshl_b32 {s(S_T0)}, {s(S_A)}, 3
    s_add_u32 {s(S_T0)}, {s(S_T0)}, {WS_ST1}
    v_lshlrev_b32 v2, 3, v2
    v_and_b32 v3, 31, v1
    v_cmp_eq_u32 vcc, 0, v3
    s_and_saveexec_b64 {s(S_EX,2)}, vcc
    buffer_store_dwordx2 {v(T,2)}, v2, {s(S_WS,4)}, {s(S_T0)} offen sc1
    s_mov_b64 exec, {s(S_EX,2)}
    """)

def half_reduce(a, r, t):
    for sh in (1, 2):
        qp = "[1,0,3,2]" if sh == 1 else "[2,3,0,1]"
        a("s_nop 1")
        a(f"v_add_f32_dpp {v(r)}, {v(r)}, {v(r)} quad_perm:{qp} row_mask:0xf bank_mask:0xf")
    a("s_nop 1")
    a(f"v_add_f32_dpp {v(r)}, {v(r)}, {v(r)} row_half_mirror row_mask:0xf bank_mask:0xf")
    a("s_nop 1")
    a(f"v_add_f32_dpp {v(r)}, {v(r)}, {v(r)} row_mirror row_mask:0xf bank_mask:0xf")
    a(f"v_mov_b32 {v(t)}, {v(r)}")
    a("s_nop 1")
    a(f"v_permlane16_swap_b32 {v(t)}, {v(r)}")
    a(f"v_add_f32 {v(r)}, {v(r)}, {v(t)}")

def g1_colsum(a, o, VCS, VA):
    AC = VA
    T = VA + 8
    for sg in range(3):
        a(f"v_lshlrev_b32 {v(AC+2*sg)}, 16, {v(VCS+sg)}")
        a(f"v_and_b32 {v(AC+2*sg+1)}, 0xffff0000, {v(VCS+sg)}")
    for i in range(1, 8):
        for sg in range(3):
            a(f"v_lshlrev_b32 {v(T+2*sg)}, 16, {v(VCS+3*i+sg)}")
            a(f"v_and_b32 {v(T+2*sg+1)}, 0xffff0000, {v(VCS+3*i+sg)}")
        for sg in range(3):
            a(f"v_pk_add_f32 {v(AC+2*sg,2)}, {v(AC+2*sg,2)}, {v(T+2*sg,2)}")
    for sg in range(3):
        a(f"v_mov_b32 {v(T+2*sg)}, {v(AC+2*sg)}")
        a(f"v_mov_b32 {v(T+2*sg+1)}, {v(AC+2*sg+1)}")
    a("s_nop 1")
    for k in range(6):
        a(f"v_permlane32_swap_b32 {v(T+k)}, {v(AC+k)}")
    for k in range(6):
        a(f"v_add_f32 {v(AC+k)}, {v(AC+k)}, {v(T+k)}")
    a(f"""
    v_and_b32 v3, 31, v1
    v_lshlrev_b32 v3, 3, v3
    s_mul_i32 {s(S_T0)}, {s(S_W4)}, 768
    s_add_u32 {s(S_T0)}, {s(S_T0)}, {LSM}
    v_add_u32 v3, {s(S_T0)}, v3
    v_cmp_gt_u32 vcc, 32, v1
    s_and_saveexec_b64 {s(S_EX,2)}, vcc
    """)
    for sg in range(3):
        a(f"ds_write_b64 v3, {v(AC+2*sg,2)} offset:{L_CSP + 256*sg}")
    a(f"s_mov_b64 exec, {s(S_EX,2)}")
    a("s_waitcnt lgkmcnt(0)")


V_QF = 8; V_KF = (16, 24); V_O = 32; V_S = 64
V_M = 192; V_NM = 194; V_L0 = 196; V_L1 = 198; V_T = 200
V_KO, V_N1, V_N2 = 208, 209, 210
S_QB, S_HH, S_N = 55, 56, 57
BIG = 2.0**100
def Sreg(i): return V_S + 16*i
CR = [(r & 3) + 8*(r >> 2) for r in range(16)]

def lds_last_arriver(a, cnt_off, nwaves, label):
    a(f"""
    v_mov_b32 v2, {LSM + cnt_off}
    v_mov_b32 v3, 1
    v_cmp_eq_u32 vcc, 0, v1
    s_and_saveexec_b64 {s(S_EX,2)}, vcc
    ds_add_rtn_u32 v4, v2, v3
    s_waitcnt lgkmcnt(0)
    s_mov_b64 exec, {s(S_EX,2)}
    v_readfirstlane_b32 {s(S_T0)}, v4
    s_cmp_lg_u32 {s(S_T0)}, {nwaves-1}
    s_cbranch_scc1 {label}
    """)

def set_flag(a, ob_off):
    a(f"""
    s_lshl_b32 {s(S_T0)}, {s(S_PID)}, 14
    s_add_u32 {s(S_T0)}, {s(S_T0)}, {WS_OB + ob_off}
    v_mov_b32 v3, 1
    v_cmp_eq_u32 vcc, 0, v1
    s_and_saveexec_b64 {s(S_EX,2)}, vcc
    buffer_store_dword v3, off, {s(S_WS,4)}, {s(S_T0)} sc1
    s_mov_b64 exec, {s(S_EX,2)}
    """)

def poll_flag(a, soff, errcode):
    lab = a.newlabel("L_poll")
    a(f"s_mov_b32 {s(S_T3)}, {SPIN}")
    a.label(lab)
    a(f"""
    buffer_load_dword v2, off, {s(S_WS,4)}, {s(soff)} sc1
    s_waitcnt vmcnt(0)
    v_readfirstlane_b32 {s(S_T2)}, v2
    s_cmp_eq_u32 {s(S_T2)}, 1
    s_cbranch_scc1 {lab}_ok
    s_sleep 1
    s_sub_u32 {s(S_T3)}, {s(S_T3)}, 1
    s_cmp_lg_u32 {s(S_T3)}, 0
    s_cbranch_scc1 {lab}
    s_mov_b32 {s(S_ERR)}, {errcode}
    """)
    a.label(lab + "_ok")

def mask_init(a, d, far):
    for r in range(16):
        if not far:
            k = -CR[r] * BIG
            a(f"v_fmaak_f32 {v(d+r)}, {v(V_T)}, {v(V_T+1)}, {fbits(k)}")
        else:
            k = (CR[r] - 0.5) * BIG
            a(f"v_fmaak_f32 {v(d+r)}, {v(V_T)}, {v(V_T+2)}, {fbits(k)}")
    for r in range(16):
        a(f"v_min_f32 {v(d+r)}, 0, {v(d+r)}")

def att_segment(a, o, name, nmax, addr, masked, first):
    end_qk = a.newlabel(name + "_qk"); end_mx = a.newlabel(name + "_mx"); end_pv = a.newlabel(name + "_pv")
    def rd(i, voff):
        reg, off = addr(i)
        kf = V_KF[i & 1]
        a(f"ds_read_b128 {v(kf,4)}, {v(reg)} offset:{off+voff}")
        a(f"ds_read_b128 {v(kf+4,4)}, {v(reg)} offset:{off+voff+1024}")
    rd(0, 0)
    for i in range(nmax):
        if i == masked:
            mask_init(a, Sreg(i), far=(not first))
        if i + 1 < nmax:
            rd(i+1, 0); a("s_waitcnt lgkmcnt(2)")
        else:
            a("s_waitcnt lgkmcnt(0)")
        kf = V_KF[i & 1]
        c = v(Sreg(i),16) if i == masked else "0"
        a(f"v_mfma_f32_32x32x16_bf16 {v(Sreg(i),16)}, {v(kf,4)}, {v(V_QF,4)}, {c}")
        a(f"v_mfma_f32_32x32x16_bf16 {v(Sreg(i),16)}, {v(kf+4,4)}, {v(V_QF+4,4)}, {v(Sreg(i),16)}")
        if i + 1 < nmax:
            a(f"s_cmp_eq_u32 {s(S_N)}, {i+1}")
            a(f"s_cbranch_scc1 {end_qk}")
    a.label(end_qk)
    a("s_waitcnt lgkmcnt(0)")
    rd(0, 8192)
    a("s_nop 7"); a("s_nop 1")
    T = V_T + 4
    for i in range(nmax):
        S = Sreg(i)
        if i == 0:
            a(f"v_max3_f32 {v(T)}, {v(S)}, {v(S+1)}, {v(S+2)}")
            a(f"v_max3_f32 {v(T+1)}, {v(S+3)}, {v(S+4)}, {v(S+5)}")
            a(f"v_max3_f32 {v(T)}, {v(S+6)}, {v(S+7)}, {v(T)}")
            a(f"v_max3_f32 {v(T+1)}, {v(S+8)}, {v(S+9)}, {v(T+1)}")
            a(f"v_max3_f32 {v(T)}, {v(S+10)}, {v(S+11)}, {v(T)}")
            a(f"v_max3_f32 {v(T+1)}, {v(S+12)}, {v(S+13)}, {v(T+1)}")
            a(f"v_max3_f32 {v(T)}, {v(S+14)}, {v(S+15)}, {v(T)}")
        else:
            for q in range(8):
                a(f"v_max3_f32 {v(T+(q&1))}, {v(S+2*q)}, {v(S+2*q+1)}, {v(T+(q&1))}")
        if i + 1 < nmax:
            a(f"s_cmp_eq_u32 {s(S_N)}, {i+1}")
            a(f"s_cbranch_scc1 {end_mx}")
    a.label(end_mx)
    a(f"""
    v_max_f32 {v(T)}, {v(T)}, {v(T+1)}
    v_mov_b32 {v(T+1)}, {v(T)}
    s_nop 1
    v_permlane32_swap_b32 {v(T+1)}, {v(T)}
    v_max_f32 {v(T)}, {v(T)}, {v(T+1)}
    """)
    if first:
        a(f"""
        v_mov_b32 {v(V_M)}, {v(T)}
        v_sub_f32 {v(V_NM)}, 0, {v(T)}
        v_mov_b32 {v(V_L0)}, 0
        v_mov_b32 {v(V_L0+1)}, 0
        v_mov_b32 {v(V_L1)}, 0
        v_mov_b32 {v(V_L1+1)}, 0
        """)
    else:
        a(f"""
        v_max_f32 {v(T)}, {v(T)}, {v(V_M)}
        v_sub_f32 {v(T+2)}, {v(V_M)}, {v(T)}
        v_exp_f32 {v(T+2)}, {v(T+2)}
        v_mov_b32 {v(V_M)}, {v(T)}
        v_sub_f32 {v(V_NM)}, 0, {v(T)}
        """)
        for q in range(8):
            a(f"v_pk_mul_f32 {v(V_O+2*q,2)}, {v(V_O+2*q,2)}, {v(T+2,2)} op_sel_hi:[1,0]")
        a(f"v_pk_mul_f32 {v(V_L0,2)}, {v(V_L0,2)}, {v(T+2,2)} op_sel_hi:[1,0]")
        a(f"v_pk_mul_f32 {v(V_L1,2)}, {v(V_L1,2)}, {v(T+2,2)} op_sel_hi:[1,0]")
    for i in range(nmax):
        S = Sreg(i)
        for q in range(8):
            a(f"v_pk_add_f32 {v(S+2*q,2)}, {v(S+2*q,2)}, {v(V_NM,2)} op_sel_hi:[1,0]")
        for r in range(16):
            a(f"v_exp_f32 {v(S+r)}, {v(S+r)}")
        for q in range(8):
            L = V_L0 if (q & 1) == 0 else V_L1
            a(f"v_pk_add_f32 {v(L,2)}, {v(L,2)}, {v(S+2*q,2)}")
        for q in range(8):
            a(f"v_cvt_pk_bf16_f32 {v(S+q)}, {v(S+2*q)}, {v(S+2*q+1)}")
        vf = V_KF[i & 1]
        if i + 1 < nmax:
            rd(i+1, 8192); a("s_waitcnt lgkmcnt(2)")
        else:
            a("s_waitcnt lgkmcnt(0)"); a("s_nop 0")
        c = "0" if (first and i == 0) else v(V_O,16)
        a(f"v_mfma_f32_32x32x16_bf16 {v(V_O,16)}, {v(vf,4)}, {v(S,4)}, {c}")
        a(f"v_mfma_f32_32x32x16_bf16 {v(V_O,16)}, {v(vf+4,4)}, {v(S+4,4)}, {v(V_O,16)}")
        if i + 1 < nmax:
            a(f"s_cmp_eq_u32 {s(S_N)}, {i+1}")
            a(f"s_cbranch_scc1 {end_pv}")
    a.label(end_pv)
    a("s_waitcnt lgkmcnt(0)")

def attention(a, o):
    a(f"""
    s_lshr_b32 {s(S_HH)}, {s(S_W)}, 1
    s_and_b32 {s(S_HH)}, {s(S_HH)}, 1
    s_and_b32 {s(S_T0)}, {s(S_W)}, 1
    s_sub_u32 {s(S_T1)}, 3, {s(S_T0)}
    s_cmp_lt_u32 {s(S_W)}, 4
    s_cselect_b32 {s(S_QB)}, {s(S_T0)}, {s(S_T1)}
    s_cbranch_scc0 L_att_noflag
    s_waitcnt vmcnt(0)
    """)
    lds_last_arriver(a, L_CNT, 4, "L_att_noflag")
    set_flag(a, OB_KVF)
    a.label("L_att_noflag")
    a(f"""
    v_lshlrev_b32 v2, 4, v1                    ; lane*16
    s_lshl_b32 {s(S_T0)}, {s(S_HH)}, 14
    s_lshl_b32 {s(S_T1)}, {s(S_QB)}, 11
    s_add_u32 {s(S_T2)}, {s(S_T0)}, {s(S_T1)}
    v_add_u32 {v(V_KO)}, {s(S_T2)}, v2
    v_add_u32 {v(V_N2)}, {A_N2}, {v(V_KO)}
    v_add_u32 {v(V_KO)}, {A_OWN - 3*2048}, {v(V_KO)}
    v_add_u32 {v(V_N1)}, {s(S_T0)}, v2
    v_add_u32 {v(V_N1)}, {A_N1}, {v(V_N1)}
    s_lshl_b32 {s(S_T0)}, {s(S_HH)}, 13
    s_add_u32 {s(S_T0)}, {s(S_T0)}, {s(S_T1)}
    s_add_u32 {s(S_T0)}, {s(S_T0)}, {A_Q}
    v_add_u32 v3, {s(S_T0)}, v2
    ds_read_b128 {v(V_QF,4)}, v3
    ds_read_b128 {v(V_QF+4,4)}, v3 offset:1024
    v_and_b32 v4, 31, v1
    v_lshrrev_b32 v5, 5, v1
    v_lshlrev_b32 v5, 2, v5
    v_sub_u32 v4, v4, v5
    v_cvt_f32_i32 {v(V_T)}, v4
    v_mov_b32 {v(V_T+1)}, {fbits(BIG)}
    v_mov_b32 {v(V_T+2)}, {fbits(-BIG)}
    s_add_u32 {s(S_N)}, {s(S_QB)}, 1
    """)
    att_segment(a, o, "L_s1", 4, lambda i: (V_KO, (3-i)*2048), 0, True)
    stamp(a, o, 4)
    a(f"""
    s_cmp_ge_u32 {s(S_W)}, 4
    s_cbranch_scc1 L_att_bn
    s_and_b32 {s(S_A)}, {s(S_W)}, 1            ; which
    s_add_u32 {s(S_T0)}, {s(S_A)}, 1
    s_cmp_lt_u32 {s(S_RB)}, {s(S_T0)}
    s_cbranch_scc1 L_att_bn
    s_sub_u32 {s(S_B)}, {s(S_RB)}, {s(S_T0)}
    s_lshl_b32 {s(S_B)}, {s(S_B)}, 4
    s_add_u32 {s(S_B)}, {s(S_B)}, {s(S_HP)}
    s_lshl_b32 {s(S_C)}, {s(S_B)}, 14
    s_add_u32 {s(S_C)}, {s(S_C)}, {WS_OB + OB_KVF}
    """)
    poll_flag(a, S_C, 2)
    a(f"""
    s_lshl_b32 {s(S_C)}, {s(S_B)}, 15
    s_lshl_b32 {s(S_T0)}, {s(S_HH)}, 14
    s_add_u32 {s(S_C)}, {s(S_C)}, {s(S_T0)}
    s_add_u32 {s(S_C)}, {s(S_C)}, {WS_KV}
    s_mul_i32 {s(S_D)}, {s(S_A)}, {A_N2 - A_N1}
    s_add_u32 {s(S_D)}, {s(S_D)}, {s(S_T0)}
    s_add_u32 {s(S_D)}, {s(S_D)}, {A_N1}
    v_lshlrev_b32 v2, 4, v1
    """)
    for g in range(4):
        a(f"s_mov_b32 m0, {s(S_D)}")
        a(f"s_add_u32 {s(S_D)}, {s(S_D)}, 4096")
        for i in range(4):
            off = f" offset:{1024*i}" if i else ""
            a(f"buffer_load_dwordx4 v2, {s(S_WS,4)}, {s(S_C)} offen{off} sc1 lds")
        a(f"s_add_u32 {s(S_C)}, {s(S_C)}, 4096")
    a("s_waitcnt vmcnt(0)")
    a.label("L_att_bn")
    a("s_barrier")
    stamp(a, o, 5)
    a(f"""
    s_cmp_eq_u32 {s(S_RB)}, 0
    s_cbranch_scc1 L_att_fin
    s_sub_u32 {s(S_N)}, 8, {s(S_QB)}
    s_cmp_eq_u32 {s(S_RB)}, 1
    s_cselect_b32 {s(S_N)}, 4, {s(S_N)}
    """)
    att_segment(a, o, "L_s2", 8, lambda i: (V_N1, i*2048) if i < 4 else (V_N2, (i-4)*2048), 4, False)
    a.label("L_att_fin")
    T = V_T + 4
    a(f"""
    v_pk_add_f32 {v(V_L0,2)}, {v(V_L0,2)}, {v(V_L1,2)}
    v_add_f32 {v(T)}, {v(V_L0)}, {v(V_L0+1)}
    v_mov_b32 {v(T+1)}, {v(T)}
    s_nop 1
    v_permlane32_swap_b32 {v(T+1)}, {v(T)}
    v_add_f32 {v(T)}, {v(T)}, {v(T+1)}
    v_rcp_f32 {v(T)}, {v(T)}
    s_lshl_b32 {s(S_T0)}, {s(S_RB)}, 2
    s_add_u32 {s(S_T0)}, {s(S_T0)}, {s(S_QB)}
    s_lshl_b32 {s(S_T0)}, {s(S_T0)}, 5
    s_lshl_b32 {s(S_T1)}, {s(S_HP)}, 1
    s_add_u32 {s(S_T0)}, {s(S_T0)}, {s(S_T1)}
    s_add_u32 {s(S_T0)}, {s(S_T0)}, {s(S_HH)}
    s_lshl_b32 {s(S_T0)}, {s(S_T0)}, 11
    s_add_u32 {s(S_T0)}, {s(S_T0)}, {WS_O}
    v_lshlrev_b32 v2, 4, v1
    s_nop 3
    """)
    for q in range(8):
        a(f"v_pk_mul_f32 {v(V_O+2*q,2)}, {v(V_O+2*q,2)}, {v(T,2)} op_sel_hi:[1,0]")
    for q in range(8):
        a(f"v_cvt_pk_bf16_f32 {v(V_O+q)}, {v(V_O+2*q)}, {v(V_O+2*q+1)}")
    a(f"buffer_store_dwordx4 {v(V_O,4)}, v2, {s(S_WS,4)}, {s(S_T0)} offen sc1")
    a(f"buffer_store_dwordx4 {v(V_O+4,4)}, v2, {s(S_WS,4)}, {s(S_T0)} offen offset:1024 sc1")
    stamp(a, o, 6)


SLOT2 = 49152; A2 = 0; W2 = 16384
LS2 = 147456
P_PS = 0
P_MU = 4096; P_RS = 4352
P_SEL = 4608
P_XS = 4736
P_RED = 8832
P_RED2 = 10880
S_RT, S_CT = 58, 59
S_WR = 60
V2_AA = 8; V2_WA = 11
V2_FR = 16
V2_ACC = 64
V2_X = 96
V2_WR = 112
V2_WD = 136
def f2(p, k): return V2_FR + 24*p + 12*k

def g2_reads(p, slot, grp):
    r = []
    for k in range(2):
        b = f2(p, k); t = 2*grp + k
        r.append(f"ds_read_b128 {v(b,4)}, {v(V2_AA+slot)} offset:{grp*2048 + k*1024}")
        r.append(f"ds_read_b64_tr_b16 {v(b+8,2)}, {v(V2_WA+slot)} offset:{(16*t)*256}")
        r.append(f"ds_read_b64_tr_b16 {v(b+10,2)}, {v(V2_WA+slot)} offset:{(16*t+8)*256}")
        r.append(f"ds_read_b128 {v(b+4,4)}, {v(V2_AA+slot)} offset:{8192 + grp*2048 + k*1024}")
    return r
def g2_mfmas(p, first):
    m = []
    for k in range(2):
        b = f2(p, k)
        for rb2 in range(2):
            c = "0" if (first and k == 0) else v(V2_ACC+16*rb2,16)
            m.append(f"v_mfma_f32_32x32x16_bf16 {v(V2_ACC+16*rb2,16)}, {v(b+8,4)}, {v(b+4*rb2,4)}, {c}")
    return m

def gemm2_entry(a, o):
    lab = a.newlabel("L_oflag")
    a("s_waitcnt vmcnt(0)")
    lds_last_arriver(a, L_CNT+4, 8, lab)
    set_flag(a, OB_OF)
    a.label(lab)
    a(f"""
    s_load_dwordx2 {s(S_WQ,2)}, s[0:1], 16        ; wo
    s_load_dwordx2 {s(S_WR,2)}, s[0:1], 32        ; w_r
    s_load_dwordx2 {s(S_AUX,2)}, s[0:1], 56       ; w_down
    s_mov_b32 {s(S_WQ+2)}, {1024*1024*2}
    s_mov_b32 {s(S_AUX+2)}, {3584*1024*2}
    s_mov_b32 {s(S_AUX+3)}, 0x20000
    s_lshr_b32 {s(S_T0)}, {s(S_HP)}, 3            ; rt
    s_lshl_b32 {s(S_RT)}, {s(S_RB)}, 1
    s_add_u32 {s(S_RT)}, {s(S_RT)}, {s(S_T0)}     ; RT
    s_and_b32 {s(S_CT)}, {s(S_HP)}, 7
    s_waitcnt lgkmcnt(0)
    s_barrier                                      ; BA
    """)
    stamp(a, o, 7)
    a(f"""
    s_cmp_ge_u32 {s(S_W)}, 4
    s_cbranch_scc1 L_g2_loader
    """)

def load_wdown(a):
    a(f"""
    v_lshlrev_b32 v2, 2, v0
    s_min_u32 {s(S_T0)}, {s(S_PID)}, 223
    s_lshl_b32 {s(S_T0)}, {s(S_T0)}, 15
    """)
    for j in range(16):
        off = f" offset:{2048*(j&1)}" if (j & 1) else ""
        a(f"buffer_load_dword {v(V2_WD+j)}, v2, {s(S_AUX,4)}, {s(S_T0)} offen{off}")
        if j & 1: a(f"s_add_u32 {s(S_T0)}, {s(S_T0)}, 4096")

def gemm2_compute(a, o):
    lab = a.newlabel("L_opoll")
    a(f"""
    s_cmp_lg_u32 {s(S_W)}, 0
    s_cbranch_scc1 {lab}_done
    v_min_u32 v2, 15, v1
    v_lshlrev_b32 v2, 14, v2
    s_lshl_b32 {s(S_T0)}, {s(S_RB)}, 18
    s_add_u32 {s(S_T0)}, {s(S_T0)}, {WS_OB + OB_OF}
    s_mov_b32 {s(S_T3)}, {SPIN}
    """)
    a.label(lab)
    a(f"""
    buffer_load_dword v3, v2, {s(S_WS,4)}, {s(S_T0)} offen sc1
    s_waitcnt vmcnt(0)
    v_cmp_ne_u32 vcc, 1, v3
    s_cmp_eq_u64 vcc, 0
    s_cbranch_scc1 {lab}_done
    s_sleep 1
    s_sub_u32 {s(S_T3)}, {s(S_T3)}, 1
    s_cmp_lg_u32 {s(S_T3)}, 0
    s_cbranch_scc1 {lab}
    s_mov_b32 {s(S_ERR)}, 3
    """)
    a.label(lab + "_done")
    a("s_barrier")
    stamp(a, o, 8)
    a(f"""
    v_and_b32 v2, 31, v1
    v_lshrrev_b32 v3, 5, v1
    s_lshl_b32 {s(S_T0)}, {s(S_CT)}, 8
    s_lshl_b32 {s(S_T1)}, {s(S_W4)}, 6
    s_add_u32 {s(S_T0)}, {s(S_T0)}, {s(S_T1)}
    v_lshl_add_u32 v4, v3, 3, {s(S_T0)}            ; + 8*hi
    v_lshl_add_u32 v5, v2, 11, v4                  ; + row*2048
    s_lshl_b32 {s(S_T1)}, {s(S_RT)}, 17            ; 64RT*2048
    s_add_u32 {s(S_T2)}, {s(S_T1)}, 65536
    """)
    for b in range(2):
        for q in range(4):
            off = f" offset:{16*q}" if q else ""
            a(f"buffer_load_dwordx2 {v(V2_X+8*b+2*q,2)}, v5, {s(S_X,4)}, {s(S_T1 if b == 0 else S_T2)} offen{off}")
    for q in range(4):
        off = f" offset:{16*q}" if q else ""
        a(f"global_load_dwordx2 {v(V2_WR+2*q,2)}, v4, {s(S_WR,2)}{off}")
    load_wdown(a)
    a(f"""
    v_lshlrev_b32 v6, 4, v1
    v_mov_b32 {v(V2_AA)}, v6
    v_add_u32 {v(V2_AA+1)}, {SLOT2}, v6
    v_add_u32 {v(V2_AA+2)}, {2*SLOT2}, v6
    v_lshrrev_b32 v6, 4, v1              ; g
    v_and_b32 v6, 1, v6                  ; g&1
    v_and_b32 v7, 15, v1
    v_lshrrev_b32 v7, 2, v7              ; r4
    v_xor_b32 v14, {s(S_W4)}, v7         ; cb ^ r4
    v_lshl_add_u32 v7, v3, 2, v7         ; 4*hi + r4
    v_lshlrev_b32 v7, 8, v7              ; *256
    v_lshl_add_u32 v7, v14, 6, v7
    v_lshl_add_u32 v7, v6, 5, v7
    v_and_b32 v6, 3, v1
    v_lshl_add_u32 v7, v6, 3, v7
    v_add_u32 {v(V2_WA)}, {W2}, v7
    v_add_u32 {v(V2_WA+1)}, {W2+SLOT2}, v7
    v_add_u32 {v(V2_WA+2)}, {W2+2*SLOT2}, v7
    s_setprio 1
    s_barrier                             ; B'0
    """)
    stamp(a, o, 9)
    for r in g2_reads(0, 0, 0): a(r)
    NG = 8
    n = 0
    for g in range(NG):
        slot = g % 3
        for grp in range(4):
            p = n & 1; n += 1
            a("s_waitcnt lgkmcnt(0)")
            ms = g2_mfmas(p, first=(g == 0 and grp == 0))
            if grp < 3:
                rd = g2_reads(1-p, slot, grp+1)
                a(ms[0]); [a(x) for x in rd[0:3]]
                a(ms[1]); [a(x) for x in rd[3:6]]
                a(ms[2]); [a(x) for x in rd[6:8]]
                a(ms[3])
            elif g < NG-1:
                rd = g2_reads(1-p, (g+1) % 3, 0)
                a(ms[0])
                a("s_barrier")
                [a(x) for x in rd[0:3]]
                a(ms[1]); [a(x) for x in rd[3:6]]
                a(ms[2]); [a(x) for x in rd[6:8]]
                a(ms[3])
            else:
                for x in ms: a(x)
    a("s_setprio 0")
    stamp(a, o, 10)

def gemm2_loader(a, o):
    a.label("L_g2_loader")
    VWO = 8
    VAO = 16
    a(f"""
    v_lshrrev_b32 v2, 4, v1              ; row4
    v_and_b32 v3, 15, v1
    v_lshlrev_b32 v4, 2, v2
    v_xor_b32 v3, v3, v4
    v_lshlrev_b32 v3, 4, v3
    v_lshl_add_u32 v3, v2, 11, v3
    v_lshlrev_b32 {v(VAO)}, 4, v1
    """)
    for i in range(8):
        a(f"v_add_u32 {v(VWO+i)}, {i*8192 - (i&3)*1024}, v3")
    a(f"""
    s_lshl_b32 {s(S_SW)}, {s(S_W4)}, 16          ; 32lw*2048
    s_lshl_b32 {s(S_T0)}, {s(S_CT)}, 8
    s_add_u32 {s(S_SW)}, {s(S_SW)}, {s(S_T0)}
    s_lshr_b32 {s(S_T0)}, {s(S_W4)}, 1           ; rb2
    s_and_b32 {s(S_T1)}, {s(S_W4)}, 1            ; half
    s_lshl_b32 {s(S_T2)}, {s(S_RT)}, 1
    s_add_u32 {s(S_T2)}, {s(S_T2)}, {s(S_T0)}
    s_lshl_b32 {s(S_T2)}, {s(S_T2)}, 5
    s_lshl_b32 {s(S_T3)}, {s(S_T1)}, 1
    s_add_u32 {s(S_T2)}, {s(S_T2)}, {s(S_T3)}
    s_lshl_b32 {s(S_SX)}, {s(S_T2)}, 11
    s_add_u32 {s(S_SX)}, {s(S_SX)}, {WS_O}
    s_lshl_b32 {s(S_T0)}, {s(S_T0)}, 13
    s_lshl_b32 {s(S_T1)}, {s(S_T1)}, 12
    s_add_u32 {s(S_T0)}, {s(S_T0)}, {s(S_T1)}
    s_lshl_b32 {s(S_T1)}, {s(S_W4)}, 13
    """)
    for sl in range(3):
        a(f"s_add_u32 {s(S_M0X+sl)}, {s(S_T0)}, {sl*SLOT2 + A2}")
        a(f"s_add_u32 {s(S_M0W+sl)}, {s(S_T1)}, {sl*SLOT2 + W2}")
    def issueW(g):
        sl = g % 3
        a(f"s_mov_b32 m0, {s(S_M0W+sl)}")
        a("s_nop 0")
        for i in range(8):
            if i == 4:
                a("s_add_u32 m0, m0, 0x1000"); a("s_nop 0")
            off = f" offset:{1024*(i&3)}" if (i&3) else ""
            a(f"buffer_load_dwordx4 {v(VWO+i)}, {s(S_WQ,4)}, {s(S_SW)} offen{off} lds")
        a(f"s_add_u32 {s(S_SW)}, {s(S_SW)}, {128*2048}")
    def issueA(g):
        sl = g % 3
        a(f"s_mov_b32 m0, {s(S_M0X+sl)}")
        a("s_nop 0")
        for i in range(4):
            off = f" offset:{1024*i}" if i else ""
            a(f"buffer_load_dwordx4 {v(VAO)}, {s(S_WS,4)}, {s(S_SX)} offen{off} sc1 lds")
        a(f"s_add_u32 {s(S_SX)}, {s(S_SX)}, 8192")
    issueW(0); issueW(1); issueW(2)
    a("s_barrier")
    stamp(a, o, 8)
    issueA(0); issueA(1); issueA(2)
    a("s_waitcnt vmcnt(8)")
    a("s_barrier")
    stamp(a, o, 9)
    for g in range(7):
        if g == 0:
            a("s_waitcnt vmcnt(4)")
        elif g == 1:
            issueA(3); issueW(3); a("s_waitcnt vmcnt(12)")
        elif g + 2 < 8:
            issueA(g+2); issueW(g+2); a("s_waitcnt vmcnt(12)")
        else:
            a("s_waitcnt vmcnt(0)")
            load_wdown(a)
        a("s_barrier")
    stamp(a, o, 10)


S_I1, S_I2 = 62, 63
V_H = V2_ACC
V_LN = 16
V_P = 48
V_WF = 120
V_OA = 184
V_TK = 185

def swap_add(a, regs, tmp):
    for i, r in enumerate(regs): a(f"v_mov_b32 {v(tmp+i)}, {v(r)}")
    a("s_nop 1")
    for i, r in enumerate(regs): a(f"v_permlane32_swap_b32 {v(tmp+i)}, {v(r)}")
    for i, r in enumerate(regs): a(f"v_add_f32 {v(r)}, {v(r)}, {v(tmp+i)}")

def ln2_partial(a, o):
    T = 16
    a("s_waitcnt vmcnt(16)")
    for q in range(8):
        a(f"v_lshlrev_b32 {v(V_WF+2*q)}, 16, {v(V2_WR+q)}")
        a(f"v_and_b32 {v(V_WF+2*q+1)}, 0xffff0000, {v(V2_WR+q)}")
    for b in range(2):
        for q in range(8):
            a(f"v_lshlrev_b32 {v(T+2*q)}, 16, {v(V2_X+8*b+q)}")
            a(f"v_and_b32 {v(T+2*q+1)}, 0xffff0000, {v(V2_X+8*b+q)}")
        for q in range(8):
            a(f"v_pk_add_f32 {v(V_H+16*b+2*q,2)}, {v(V_H+16*b+2*q,2)}, {v(T+2*q,2)}")
    R = 32
    a(f"v_pk_add_f32 {v(40,2)}, {v(V_WF,2)}, {v(V_WF+2,2)}")
    for q in range(2, 8): a(f"v_pk_add_f32 {v(40,2)}, {v(40,2)}, {v(V_WF+2*q,2)}")
    a(f"v_add_f32 {v(R+3)}, {v(40)}, {v(41)}")
    for b in range(2):
        H = V_H + 16*b
        a(f"v_pk_add_f32 {v(40,2)}, {v(H,2)}, {v(H+2,2)}")
        a(f"v_pk_mul_f32 {v(42,2)}, {v(H,2)}, {v(V_WF,2)}")
        for q in range(1, 8):
            if q >= 2: a(f"v_pk_add_f32 {v(40,2)}, {v(40,2)}, {v(H+2*q,2)}")
            a(f"v_pk_fma_f32 {v(42,2)}, {v(H+2*q,2)}, {v(V_WF+2*q,2)}, {v(42,2)}")
        a(f"v_add_f32 {v(R+4*b)}, {v(40)}, {v(41)}")
        a(f"v_add_f32 {v(R+4*b+2)}, {v(42)}, {v(43)}")
    swap_add(a, [R, R+2, R+3, R+4, R+6], 40)
    a(f"v_mov_b32 {v(R+7)}, {v(R+3)}")
    for b in range(2):
        H = V_H + 16*b
        a(f"v_mul_f32 {v(46)}, {fbits(-1.0/32)}, {v(R+4*b)}")
        a("s_nop 0")
        for q in range(8):
            a(f"v_pk_add_f32 {v(T+2*q,2)}, {v(H+2*q,2)}, {v(46,2)} op_sel_hi:[1,0]")
        a(f"v_pk_mul_f32 {v(40,2)}, {v(T,2)}, {v(T,2)}")
        for q in range(1, 8):
            a(f"v_pk_fma_f32 {v(40,2)}, {v(T+2*q,2)}, {v(T+2*q,2)}, {v(40,2)}")
        a(f"v_add_f32 {v(R+4*b+1)}, {v(40)}, {v(41)}")
    swap_add(a, [R+1, R+5], 40)
    a(f"""
    v_and_b32 v2, 31, v1
    s_lshl_b32 {s(S_T0)}, {s(S_W4)}, 9
    s_add_u32 {s(S_T0)}, {s(S_T0)}, {LS2 + P_PS}
    v_lshl_add_u32 v3, v2, 4, {s(S_T0)}
    v_cmp_gt_u32 vcc, 32, v1
    s_and_saveexec_b64 {s(S_EX,2)}, vcc
    ds_write_b128 v3, {v(R,4)}
    ds_write_b128 v3, {v(R+4,4)} offset:2048
    s_mov_b64 exec, {s(S_EX,2)}
    s_waitcnt lgkmcnt(0)
    """)

def wave_max(a, r, t):
    for qp in ("[1,0,3,2]", "[2,3,0,1]"):
        a("s_nop 1")
        a(f"v_max_f32_dpp {v(r)}, {v(r)}, {v(r)} quad_perm:{qp} row_mask:0xf bank_mask:0xf")
    a("s_nop 1")
    a(f"v_max_f32_dpp {v(r)}, {v(r)}, {v(r)} row_half_mirror row_mask:0xf bank_mask:0xf")
    a("s_nop 1")
    a(f"v_max_f32_dpp {v(r)}, {v(r)}, {v(r)} row_mirror row_mask:0xf bank_mask:0xf")
    a(f"v_mov_b32 {v(t)}, {v(r)}")
    a("s_nop 1")
    a(f"v_permlane16_swap_b32 {v(t)}, {v(r)}")
    a(f"v_max_f32 {v(r)}, {v(r)}, {v(t)}")
    a(f"v_mov_b32 {v(t)}, {v(r)}")
    a("s_nop 1")
    a(f"v_permlane32_swap_b32 {v(t)}, {v(r)}")
    a(f"v_max_f32 {v(r)}, {v(r)}, {v(t)}")

def top2(a, val, tmp, s_i1, s_v1, s_i2, s_v2):
    a(f"v_mov_b32 {v(tmp)}, {v(val)}")
    wave_max(a, tmp, tmp+1)
    a(f"""
    v_cmp_eq_f32 vcc, {v(tmp)}, {v(val)}
    v_readfirstlane_b32 {s(s_v1)}, {v(tmp)}
    s_ff1_i32_b64 {s(s_i1)}, vcc
    s_max_i32 {s(s_i1)}, {s(s_i1)}, 0
    v_mov_b32 {v(tmp+1)}, 0xff800000
    v_cmp_eq_u32 vcc, {s(s_i1)}, v1
    s_nop 1
    v_cndmask_b32 {v(val)}, {v(val)}, {v(tmp+1)}, vcc
    v_mov_b32 {v(tmp)}, {v(val)}
    """)
    wave_max(a, tmp, tmp+1)
    a(f"""
    v_cmp_eq_f32 vcc, {v(tmp)}, {v(val)}
    v_readfirstlane_b32 {s(s_v2)}, {v(tmp)}
    s_ff1_i32_b64 {s(s_i2)}, vcc
    s_max_i32 {s(s_i2)}, {s(s_i2)}, 0
    """)

def poll_valid(a, name, loads, regs, errcode, tmp):
    assert tmp not in list(regs)
    lab = a.newlabel(name)
    a(f"s_mov_b32 {s(S_T3)}, {SPIN}")
    a.label(lab)
    loads()
    a("s_waitcnt vmcnt(0)")
    rs = list(regs)
    a(f"v_max_u32 {v(tmp)}, {v(rs[0])}, {v(rs[1])}")
    i = 2
    while i < len(rs):
        if i + 1 < len(rs):
            a(f"v_max3_u32 {v(tmp)}, {v(rs[i])}, {v(rs[i+1])}, {v(tmp)}"); i += 2
        else:
            a(f"v_max_u32 {v(tmp)}, {v(rs[i])}, {v(tmp)}"); i += 1
    a(f"""
    v_cmp_eq_u32 vcc, -1, {v(tmp)}
    s_cmp_eq_u64 vcc, 0
    s_cbranch_scc1 {lab}_ok
    s_sleep 1
    s_sub_u32 {s(S_T3)}, {s(S_T3)}, 1
    s_cmp_lg_u32 {s(S_T3)}, 0
    s_cbranch_scc1 {lab}
    s_mov_b32 {s(S_ERR)}, {errcode}
    """)
    a.label(lab + "_ok")

S_V1, S_V2 = 96, 97
def ln2_stats_wave(a, o):
    R = 24
    a(f"""
    v_lshrrev_b32 v2, 5, v1
    v_and_b32 v3, 31, v1
    v_lshlrev_b32 v2, 11, v2
    v_lshl_add_u32 v2, v3, 4, v2
    v_add_u32 v2, {LS2 + P_PS}, v2
    """)
    for c in range(4):
        a(f"ds_read_b128 {v(R+4*c,4)}, v2 offset:{512*c}")
    a("s_waitcnt lgkmcnt(0)")
    P = 40
    def combine(R, n, width, P, T):
        a(f"v_add_f32 {v(P)}, {v(R)}, {v(R+4)}")
        for c in range(2, n): a(f"v_add_f32 {v(P)}, {v(P)}, {v(R+4*c)}")
        for k in (1, 2, 3):
            a(f"v_add_f32 {v(P+k)}, {v(R+k)}, {v(R+4+k)}")
            for c in range(2, n): a(f"v_add_f32 {v(P+k)}, {v(P+k)}, {v(R+4*c+k)}")
        a(f"v_mul_f32 {v(T)}, {fbits(-1.0/(n*width))}, {v(P)}")
        a(f"v_mov_b32 {v(T+2)}, 0")
        for c in range(n):
            a(f"v_fma_f32 {v(T+1)}, {v(R+4*c)}, {s(S_T1)}, {v(T)}")
            a(f"v_fmac_f32 {v(T+2)}, {v(T+1)}, {v(T+1)}")
        a(f"v_fmac_f32 {v(P+1)}, {fbits(float(width))}, {v(T+2)}")
    a(f"s_mov_b32 {s(S_T1)}, {fbits(1.0/32)}")
    combine(R, 4, 32, P, 44)
    a(f"""
    v_lshlrev_b32 v4, 4, v1
    s_lshl_b32 {s(S_T0)}, {s(S_PID)}, 14
    s_add_u32 {s(S_T0)}, {s(S_T0)}, {WS_OB + OB_PST}
    buffer_store_dwordx4 {v(P,4)}, v4, {s(S_WS,4)}, {s(S_T0)} offen sc1
    s_lshl_b32 {s(S_A)}, {s(S_RT)}, 17
    s_add_u32 {s(S_A)}, {s(S_A)}, {WS_OB + OB_PST}
    """)
    G = 48
    def loads():
        a(f"s_mov_b32 {s(S_T0)}, {s(S_A)}")
        for c in range(8):
            a(f"buffer_load_dwordx4 {v(G+4*c,4)}, v4, {s(S_WS,4)}, {s(S_T0)} offen sc1")
            if c < 7: a(f"s_add_u32 {s(S_T0)}, {s(S_T0)}, 16384")
    poll_valid(a, "L_pst", loads, range(G, G+32), 4, 44)
    a(f"s_mov_b32 {s(S_T1)}, {fbits(1.0/128)}")
    combine(G, 8, 128, P, 44)
    a(f"""
    v_mov_b32 v46, {fbits(1e-5)}
    v_fmac_f32 v46, {fbits(1.0/1024)}, {v(P+1)}
    v_rsq_f32 v46, v46
    v_fma_f32 v47, v44, {v(P+3)}, {v(P+2)}
    v_sub_f32 v45, 0, v44                         ; mean
    v_mul_f32 v47, v47, v46                       ; r
    v_lshlrev_b32 v2, 2, v1
    v_add_u32 v2, {LS2}, v2
    ds_write_b32 v2, v45 offset:{P_MU}
    ds_write_b32 v2, v46 offset:{P_RS}
    """)
    top2(a, 47, 48, S_I1, S_V1, S_I2, S_V2)
    a(f"""
    v_mov_b32 v4, {s(S_I1)}
    v_mov_b32 v5, {s(S_I2)}
    v_mov_b32 v2, {LS2 + P_SEL}
    ds_write_b64 v2, v[4:5]
    s_cmp_lg_u32 {s(S_CT)}, 0
    s_cbranch_scc1 L_nogr
    s_lshl_b32 {s(S_T0)}, {s(S_RT)}, 6
    v_mov_b32 v4, {s(S_V1)}
    v_add_u32 v5, {s(S_T0)}, v4
    s_add_u32 {s(S_T1)}, {s(S_T0)}, {s(S_I1)}
    s_add_u32 {s(S_T2)}, {s(S_T0)}, {s(S_I2)}
    v_mov_b32 v5, {s(S_T1)}
    v_mov_b32 v6, {s(S_V2)}
    v_mov_b32 v7, {s(S_T2)}
    s_lshl_b32 {s(S_T0)}, {s(S_PID)}, 14
    s_add_u32 {s(S_T0)}, {s(S_T0)}, {WS_OB + OB_GR}
    v_cmp_eq_u32 vcc, 0, v1
    s_and_saveexec_b64 {s(S_EX,2)}, vcc
    buffer_store_dwordx4 v[4:7], off, {s(S_WS,4)}, {s(S_T0)} sc1
    s_mov_b64 exec, {s(S_EX,2)}
    """)
    a.label("L_nogr")
    a("s_waitcnt lgkmcnt(0)")

def ln2_output(a, o):
    a(f"""
    v_and_b32 v2, 31, v1
    v_lshlrev_b32 v3, 2, v2
    v_add_u32 v3, {LS2}, v3
    v_mov_b32 v4, {LS2 + P_SEL}
    ds_read_b32 v8, v3 offset:{P_MU}
    ds_read_b32 v9, v3 offset:{P_RS}
    ds_read_b32 v10, v3 offset:{P_MU+128}
    ds_read_b32 v11, v3 offset:{P_RS+128}
    ds_read_b64 v[6:7], v4
    v_lshrrev_b32 v3, 5, v1
    s_lshl_b32 {s(S_T0)}, {s(S_CT)}, 8
    s_lshl_b32 {s(S_T1)}, {s(S_W4)}, 6
    s_add_u32 {s(S_T0)}, {s(S_T0)}, {s(S_T1)}
    v_lshl_add_u32 v5, v3, 4, {s(S_T0)}
    v_lshl_add_u32 {v(V_OA)}, v2, 11, v5
    v_mov_b32 {v(V_TK)}, v2
    v_add_u32 {v(V_TK+1)}, 32, v2
    s_waitcnt lgkmcnt(0)
    v_readfirstlane_b32 {s(S_I1)}, v6
    v_readfirstlane_b32 {s(S_I2)}, v7
    v_sub_f32 v8, 0, v8
    v_sub_f32 v10, 0, v10
    """)
    for b in range(2):
        H = V_H + 16*b; L = V_LN + 16*b; mr = 8 + 2*b
        for q in range(8):
            a(f"v_pk_add_f32 {v(L+2*q,2)}, {v(H+2*q,2)}, {v(mr,2)} op_sel_hi:[1,0]")
        for q in range(8):
            a(f"v_pk_mul_f32 {v(L+2*q,2)}, {v(L+2*q,2)}, {v(mr,2)} op_sel:[0,1] op_sel_hi:[1,1]")
        for q in range(8):
            a(f"v_pk_add_f32 {v(H+2*q,2)}, {v(H+2*q,2)}, {v(L+2*q,2)}")
    a(f"""
    v_lshrrev_b32 v3, 5, v1
    s_lshl_b32 {s(S_T1)}, {s(S_W4)}, 6
    v_lshl_add_u32 v4, v3, 3, {s(S_T1)}
    s_lshl_b32 {s(S_T1)}, {s(S_W4)}, 7
    v_lshl_add_u32 v5, v3, 4, {s(S_T1)}
    s_lshl_b32 {s(S_A)}, {s(S_PID)}, 14
    s_add_u32 {s(S_A)}, {s(S_A)}, {WS_OB}
    """)
    for ca, si in ((0, S_I1), (1, S_I2)):
        for b in range(2):
            lab = a.newlabel("L_cand")
            H = V_H + 16*b; L = V_LN + 16*b
            a(f"""
            s_lshr_b32 {s(S_T0)}, {s(si)}, 5
            s_cmp_lg_u32 {s(S_T0)}, {b}
            s_cbranch_scc1 {lab}
            """)
            for q in range(8):
                a(f"v_cvt_pk_bf16_f32 {v(V_P+q)}, {v(L+2*q)}, {v(L+2*q+1)}")
            a(f"""
            s_add_u32 {s(S_T1)}, {s(S_A)}, {OB_CLN + 256*ca}
            s_add_u32 {s(S_T2)}, {s(S_A)}, {OB_CBASE + 512*ca}
            v_cmp_eq_u32 vcc, {s(si)}, {v(V_TK+b)}
            s_and_saveexec_b64 {s(S_EX,2)}, vcc
            """)
            for q in range(4):
                off = f" offset:{16*q}" if q else ""
                a(f"buffer_store_dwordx2 {v(V_P+2*q,2)}, v4, {s(S_WS,4)}, {s(S_T1)} offen{off} sc1")
            for q in range(4):
                off = f" offset:{32*q}" if q else ""
                a(f"buffer_store_dwordx4 {v(H+4*q,4)}, v5, {s(S_WS,4)}, {s(S_T2)} offen{off} sc1")
            a(f"s_mov_b64 exec, {s(S_EX,2)}")
            a.label(lab)
    for b in range(2):
        H = V_H + 16*b; P = V_P + 8*b
        for q in range(8):
            a(f"v_cvt_pk_bf16_f32 {v(P+q)}, {v(H+2*q)}, {v(H+2*q+1)}")
        a("s_nop 1")
        for k in range(2):
            a(f"v_permlane32_swap_b32 {v(P+4*k)}, {v(P+4*k+2)}")
            a(f"v_permlane32_swap_b32 {v(P+4*k+1)}, {v(P+4*k+3)}")
    a(f"s_lshl_b32 {s(S_B)}, {s(S_RT)}, 17")
    a(f"s_add_u32 {s(S_C)}, {s(S_B)}, 65536")
    for b in range(2):
        P = V_P + 8*b
        a(f"""
        v_cmp_ne_u32 vcc, {s(S_I1)}, {v(V_TK+b)}
        v_cmp_ne_u32 {s(S_M,2)}, {s(S_I2)}, {v(V_TK+b)}
        s_and_b64 vcc, vcc, {s(S_M,2)}
        s_and_saveexec_b64 {s(S_EX,2)}, vcc
        buffer_store_dwordx4 {v(P,4)}, {v(V_OA)}, {s(S_OUT,4)}, {s(S_B if b == 0 else S_C)} offen
        buffer_store_dwordx4 {v(P+4,4)}, {v(V_OA)}, {s(S_OUT,4)}, {s(S_B if b == 0 else S_C)} offen offset:32
        s_mov_b64 exec, {s(S_EX,2)}
        """)

def out_deferred(a, o, all_rows=False):
    for b in range(2):
        P = V_P + 8*b
        a(f"""
        s_lshl_b32 {s(S_T0)}, {s(S_RT)}, 6
        v_add_u32 v2, {s(S_T0)}, {v(V_TK+b)}
        v_cmp_eq_u32 vcc, {s(S_I1)}, {v(V_TK+b)}
        v_cmp_eq_u32 {s(S_M,2)}, {s(S_I2)}, {v(V_TK+b)}
        s_or_b64 vcc, vcc, {s(S_M,2)}
        """)
        if not all_rows:
            a(f"""
            v_cmp_ne_u32 {s(S_M,2)}, {s(S_G0)}, v2
            s_and_b64 vcc, vcc, {s(S_M,2)}
            v_cmp_ne_u32 {s(S_M,2)}, {s(S_G1)}, v2
            s_and_b64 vcc, vcc, {s(S_M,2)}
            """)
        lab = a.newlabel("L_def")
        a(f"""
        s_and_saveexec_b64 {s(S_EX,2)}, vcc
        s_cbranch_execz {lab}
        buffer_store_dwordx4 {v(P,4)}, {v(V_OA)}, {s(S_OUT,4)}, {s(S_B if b == 0 else S_C)} offen
        buffer_store_dwordx4 {v(P+4,4)}, {v(V_OA)}, {s(S_OUT,4)}, {s(S_B if b == 0 else S_C)} offen offset:32
        """)
        a.label(lab)
        a(f"s_mov_b64 exec, {s(S_EX,2)}")
S_G0, S_G1, S_R0, S_R1 = 98, 99, 100, 101


P_HM = 11904
V_WDU = 152
LOG2E = 1.4426950408889634

def moe_stage_weights(a, o):
    lab = a.newlabel("L_stg")
    a(f"""
    s_cmp_ge_u32 {s(S_PID)}, 224
    s_cbranch_scc1 {lab}_done
    s_load_dwordx2 {s(S_WQ,2)}, s[0:1], 40
    s_load_dwordx2 {s(S_X,2)}, s[0:1], 48
    s_mov_b32 {s(S_WQ+2)}, {1024*3584*2}
    s_mov_b32 {s(S_X+2)}, {1024*3584*2}
    v_lshrrev_b32 v2, 1, v1
    v_mul_u32_u24 v2, 7168, v2
    v_and_b32 v3, 1, v1
    v_lshl_add_u32 v2, v3, 4, v2
    s_sub_u32 {s(S_A)}, {s(S_W)}, 5
    s_mul_i32 {s(S_A)}, {s(S_A)}, 22           ; first n
    s_add_u32 {s(S_B)}, {s(S_A)}, 22
    s_min_u32 {s(S_B)}, {s(S_B)}, 64           ; end n
    s_lshl_b32 {s(S_C)}, {s(S_PID)}, 5
    s_waitcnt lgkmcnt(0)
    """)
    a.label(lab)
    a(f"""
    s_and_b32 {s(S_T0)}, {s(S_A)}, 31
    s_mul_i32 {s(S_T0)}, {s(S_T0)}, {32*7168}
    s_add_u32 {s(S_T0)}, {s(S_T0)}, {s(S_C)}
    s_lshl_b32 m0, {s(S_A)}, 10
    s_cmp_ge_u32 {s(S_A)}, 32
    s_cbranch_scc1 {lab}_up
    buffer_load_dwordx4 v2, {s(S_WQ,4)}, {s(S_T0)} offen lds
    s_branch {lab}_nx
    """)
    a.label(lab + "_up")
    a(f"buffer_load_dwordx4 v2, {s(S_X,4)}, {s(S_T0)} offen lds")
    a.label(lab + "_nx")
    a(f"""
    s_add_u32 {s(S_A)}, {s(S_A)}, 1
    s_cmp_lt_u32 {s(S_A)}, {s(S_B)}
    s_cbranch_scc1 {lab}
    """)
    a.label(lab + "_done")

S_L1, S_L2 = 55, 56
def moe_select(a, o):
    a(f"""
    v_and_b32 v2, 31, v1
    v_lshlrev_b32 v2, 17, v2                   ; RT*8*16384
    s_mov_b32 {s(S_A)}, {WS_OB + OB_GR}
    """)
    G = 24
    def loads():
        a(f"buffer_load_dwordx4 {v(G,4)}, v2, {s(S_WS,4)}, {s(S_A)} offen sc1")
    poll_valid(a, "L_gr", loads, range(G, G+4), 5, 44)
    a(f"""
    v_cmp_gt_u32 vcc, 32, v1
    s_nop 1
    v_cndmask_b32 v28, {v(G+2)}, {v(G)}, vcc    ; value
    v_cndmask_b32 v29, {v(G+3)}, {v(G+1)}, vcc
    """)
    top2(a, 28, 30, S_L1, S_R0, S_L2, S_R1)
    a(f"""
    s_nop 3
    v_readlane_b32 {s(S_G0)}, v29, {s(S_L1)}
    v_readlane_b32 {s(S_G1)}, v29, {s(S_L2)}
    v_lshrrev_b32 v2, 4, v1                    ; lane>>4
    v_and_b32 v3, 15, v1
    v_lshlrev_b32 v2, 14, v2
    v_lshl_add_u32 v2, v3, 4, v2
    """)
    for t, sl in ((0, S_L1), (1, S_L2)):
        d = (S_A, S_B)[t]
        a(f"""
        s_and_b32 {s(S_T0)}, {s(sl)}, 31
        s_lshl_b32 {s(S_T0)}, {s(S_T0)}, 17
        s_lshr_b32 {s(S_T1)}, {s(sl)}, 5
        s_lshl_b32 {s(S_T1)}, {s(S_T1)}, 8
        s_add_u32 {s(S_T0)}, {s(S_T0)}, {s(S_T1)}
        s_add_u32 {s(d)}, {s(S_T0)}, {WS_OB + OB_CLN}
        """)
    X = 32
    def loadx():
        for t in range(2):
            d = (S_A, S_B)[t]
            a(f"buffer_load_dwordx4 {v(X+8*t,4)}, v2, {s(S_WS,4)}, {s(d)} offen sc1")
            a(f"s_add_u32 {s(S_T0)}, {s(d)}, 65536")
            a(f"buffer_load_dwordx4 {v(X+8*t+4,4)}, v2, {s(S_WS,4)}, {s(S_T0)} offen sc1")
    a(f"""
    v_mov_b32 v4, {s(S_G0)}
    v_mov_b32 v5, {s(S_G1)}
    v_mov_b32 v6, {s(S_R0)}
    v_mov_b32 v7, {s(S_R1)}
    v_mov_b32 v8, {s(S_L1)}
    v_mov_b32 v9, {s(S_L2)}
    v_mov_b32 v3, {LS2 + P_SEL}
    ds_write_b128 v3, v[4:7] offset:16
    ds_write_b64 v3, v[8:9] offset:32
    """)
    poll_valid(a, "L_xs", loadx, range(X, X+16), 6, 60)
    a(f"""
    v_lshlrev_b32 v3, 4, v1
    v_add_u32 v3, {LS2 + P_XS}, v3
    ds_write_b128 v3, {v(X,4)}
    ds_write_b128 v3, {v(X+4,4)} offset:1024
    ds_write_b128 v3, {v(X+8,4)} offset:2048
    ds_write_b128 v3, {v(X+12,4)} offset:3072
    s_waitcnt lgkmcnt(0)
    """)

def unpack_wdown(a):
    for j in range(16):
        a(f"v_lshlrev_b32 {v(V_WDU+2*j)}, 16, {v(V2_WD+j)}")
        a(f"v_and_b32 {v(V_WDU+2*j+1)}, 0xffff0000, {v(V2_WD+j)}")

def moe_read_sel(a):
    a(f"""
    v_mov_b32 v3, {LS2 + P_SEL}
    ds_read_b128 v[4:7], v3 offset:16
    ds_read_b64 v[8:9], v3 offset:32
    s_waitcnt lgkmcnt(0)
    v_readfirstlane_b32 {s(S_G0)}, v4
    v_readfirstlane_b32 {s(S_G1)}, v5
    v_readfirstlane_b32 {s(S_R0)}, v6
    v_readfirstlane_b32 {s(S_R1)}, v7
    v_readfirstlane_b32 {s(S_L1)}, v8
    v_readfirstlane_b32 {s(S_L2)}, v9
    """)

def moe_ffn(a, o):
    a(f"""
    s_cmp_ge_u32 {s(S_PID)}, 224
    s_cbranch_scc1 L_moe_red
    """)
    AG, AU = 8, 12
    F = 16
    a(f"""
    v_lshrrev_b32 v2, 4, v1                    ; g
    v_and_b32 v3, 15, v1
    v_lshrrev_b32 v4, 2, v3                    ; r
    v_lshl_add_u32 v4, v2, 2, v4               ; 4g + r
    v_lshlrev_b32 v4, 5, v4                    ; *32
    v_and_b32 v5, 3, v1
    v_lshl_add_u32 v4, v5, 3, v4               ; + cq*8
    s_lshl_b32 {s(S_T0)}, {s(S_W)}, 12         ; 128w rows * 32
    v_add_u32 v4, {s(S_T0)}, v4
    v_and_b32 v5, 1, v1                        ; token
    v_lshlrev_b32 v5, 11, v5
    v_lshl_add_u32 v5, v2, 3, v5               ; + 4g*2 bytes
    s_lshl_b32 {s(S_T0)}, {s(S_W)}, 8          ; 128w * 2
    s_add_u32 {s(S_T0)}, {s(S_T0)}, {LS2 + P_XS}
    v_add_u32 v5, {s(S_T0)}, v5
    """)
    def rd(st, f):
        for u in range(2):
            a(f"ds_read_b64 {v(f+2*u,2)}, v5 offset:{(32*st+16*u)*2}")
        for u in range(2):
            a(f"ds_read_b64_tr_b16 {v(f+4+2*u,2)}, v4 offset:{(32*st+16*u)*32}")
        for u in range(2):
            a(f"ds_read_b64_tr_b16 {v(f+8+2*u,2)}, v4 offset:{32768 + (32*st+16*u)*32}")
    rd(0, F); rd(1, F+12)
    for half in range(2):
        if half == 0:
            a("s_waitcnt lgkmcnt(0)")
            rd(2, F+24); rd(3, F+36)
        else:
            a("s_waitcnt lgkmcnt(0)")
        for k in range(2):
            f = F + 24*half + 12*k
            first = (half == 0 and k == 0)
            a(f"v_mfma_f32_16x16x32_bf16 {v(AG,4)}, {v(f+4,4)}, {v(f,4)}, {'0' if first else v(AG,4)}")
            a(f"v_mfma_f32_16x16x32_bf16 {v(AU,4)}, {v(f+8,4)}, {v(f,4)}, {'0' if first else v(AU,4)}")
    a(f"""
    v_and_b32 v3, 15, v1
    v_lshlrev_b32 v6, 6, v3                    ; t*64
    v_lshl_add_u32 v6, v2, 4, v6               ; + g*16
    s_lshl_b32 {s(S_T0)}, {s(S_W)}, 8
    s_add_u32 {s(S_T0)}, {s(S_T0)}, {LS2 + P_RED}
    v_add_u32 v6, {s(S_T0)}, v6
    v_cmp_gt_u32 vcc, 2, v3
    s_nop 4
    s_and_saveexec_b64 {s(S_EX,2)}, vcc
    ds_write_b128 v6, {v(AG,4)}
    ds_write_b128 v6, {v(AU,4)} offset:128
    s_mov_b64 exec, {s(S_EX,2)}
    s_waitcnt lgkmcnt(0)
    s_barrier                                   ; BS4
    v_and_b32 v2, 31, v1
    v_lshlrev_b32 v2, 2, v2                     ; (t*16 + c)*4
    v_add_u32 v3, {LS2 + P_RED}, v2
    """)
    T = 16
    for w in range(8):
        a(f"ds_read_b32 {v(T+w)}, v3 offset:{256*w}")
    for w in range(7):
        a(f"ds_read_b32 {v(T+8+w)}, v3 offset:{256*w+128}")
    a("s_waitcnt lgkmcnt(7)")
    a(f"ds_read_b32 {v(T+15)}, v3 offset:{256*7+128}")
    for w in range(1, 8): a(f"v_add_f32 {v(T)}, {v(T)}, {v(T+w)}")
    a("s_waitcnt lgkmcnt(0)")
    for w in range(1, 8): a(f"v_add_f32 {v(T+8)}, {v(T+8)}, {v(T+8+w)}")
    a(f"""
    v_mul_f32 {v(T+1)}, {fbits(-LOG2E)}, {v(T)}
    v_exp_f32 {v(T+1)}, {v(T+1)}
    s_nop 0
    v_add_f32 {v(T+1)}, 1.0, {v(T+1)}
    v_rcp_f32 {v(T+1)}, {v(T+1)}
    s_nop 0
    v_mul_f32 {v(T)}, {v(T)}, {v(T+1)}           ; silu(g)
    v_mul_f32 {v(T)}, {v(T)}, {v(T+8)}           ; * u
    v_and_b32 v2, 15, v1                         ; j
    v_bfe_u32 v3, v1, 4, 1                       ; t
    v_lshlrev_b32 v2, 3, v2
    v_lshl_add_u32 v2, v3, 2, v2                 ; (2j + t)*4
    s_lshl_b32 {s(S_T0)}, {s(S_W)}, 7
    s_add_u32 {s(S_T0)}, {s(S_T0)}, {LS2 + P_HM}
    v_add_u32 v2, {s(S_T0)}, v2
    ds_write_b32 v2, {v(T)}
    v_mov_b32 v3, {s(S_T0)}
    s_waitcnt lgkmcnt(0)
    """)
    HM = 24
    for q in range(8):
        a(f"ds_read_b128 {v(HM+4*q,4)}, v3 offset:{16*q}")
    a("s_waitcnt lgkmcnt(0)")
    Y = 8
    for j in range(16):
        if j == 0:
            a(f"v_pk_mul_f32 {v(Y,2)}, {v(V_WDU,2)}, {v(HM,2)} op_sel_hi:[0,1]")
            a(f"v_pk_mul_f32 {v(Y+2,2)}, {v(V_WDU,2)}, {v(HM,2)} op_sel:[1,0] op_sel_hi:[1,1]")
        else:
            a(f"v_pk_fma_f32 {v(Y,2)}, {v(V_WDU+2*j,2)}, {v(HM+2*j,2)}, {v(Y,2)} op_sel_hi:[0,1,1]")
            a(f"v_pk_fma_f32 {v(Y+2,2)}, {v(V_WDU+2*j,2)}, {v(HM+2*j,2)}, {v(Y+2,2)} op_sel:[1,0,0] op_sel_hi:[1,1,1]")
    a(f"""
    v_lshlrev_b32 v2, 4, v0
    s_lshl_b32 {s(S_T0)}, {s(S_PID)}, 14
    s_add_u32 {s(S_T0)}, {s(S_T0)}, {WS_OB + OB_YP}
    buffer_store_dwordx4 {v(Y,4)}, v2, {s(S_WS,4)}, {s(S_T0)} offen sc1
    """)
    a.label("L_moe_red")
    stamp(a, o, 13)
    a(f"""
    s_and_b32 {s(S_T0)}, {s(S_PID)}, 3
    s_cmp_lg_u32 {s(S_T0)}, 0
    s_cbranch_scc1 L_fin
    s_lshr_b32 {s(S_A)}, {s(S_PID)}, 2          ; cg
    v_lshrrev_b32 v2, 3, v1                     ; lg
    v_and_b32 v3, 7, v1
    v_lshlrev_b32 v4, 14, v2
    v_lshl_add_u32 v4, v3, 4, v4
    s_mul_i32 {s(S_B)}, {s(S_W)}, {28*16384}
    s_lshl_b32 {s(S_T0)}, {s(S_A)}, 7
    s_add_u32 {s(S_B)}, {s(S_B)}, {s(S_T0)}
    s_add_u32 {s(S_B)}, {s(S_B)}, {WS_OB + OB_YP}
    v_mov_b32 v36, 0
    v_mov_b32 v37, 0
    v_mov_b32 v38, 0
    v_mov_b32 v39, 0
    """)
    G = 24
    def loads():
        for i in range(3):
            a(f"s_add_u32 {s(S_T0)}, {s(S_B)}, {i*8*16384}")
            a(f"buffer_load_dwordx4 {v(G+4*i,4)}, v4, {s(S_WS,4)}, {s(S_T0)} offen sc1")
        a(f"s_add_u32 {s(S_T0)}, {s(S_B)}, {3*8*16384}")
        a("s_mov_b32 exec_hi, 0")
        a(f"buffer_load_dwordx4 {v(G+12,4)}, v4, {s(S_WS,4)}, {s(S_T0)} offen sc1")
        a("s_mov_b32 exec_hi, -1")
    poll_valid(a, "L_yp", loads, range(G, G+16), 7, 44)
    for i in range(1, 4):
        a(f"v_pk_add_f32 {v(G,2)}, {v(G,2)}, {v(G+4*i,2)}")
        a(f"v_pk_add_f32 {v(G+2,2)}, {v(G+2,2)}, {v(G+4*i+2,2)}")
    a("s_nop 1")
    for k in range(4):
        a(f"v_add_f32_dpp {v(G+k)}, {v(G+k)}, {v(G+k)} row_ror:8 row_mask:0xf bank_mask:0xf")
    for k in range(4): a(f"v_mov_b32 {v(G+4+k)}, {v(G+k)}")
    a("s_nop 1")
    for k in range(4): a(f"v_permlane16_swap_b32 {v(G+4+k)}, {v(G+k)}")
    for k in range(4): a(f"v_add_f32 {v(G+k)}, {v(G+k)}, {v(G+4+k)}")
    for k in range(4): a(f"v_mov_b32 {v(G+4+k)}, {v(G+k)}")
    a("s_nop 1")
    for k in range(4): a(f"v_permlane32_swap_b32 {v(G+4+k)}, {v(G+k)}")
    for k in range(4): a(f"v_add_f32 {v(G+k)}, {v(G+k)}, {v(G+4+k)}")
    a(f"""
    s_lshl_b32 {s(S_T0)}, {s(S_W)}, 7
    s_add_u32 {s(S_T0)}, {s(S_T0)}, {LS2 + P_RED2}
    v_lshl_add_u32 v2, v1, 4, {s(S_T0)}
    v_cmp_gt_u32 vcc, 8, v1
    s_and_saveexec_b64 {s(S_EX,2)}, vcc
    ds_write_b128 v2, {v(G,4)}
    s_mov_b64 exec, {s(S_EX,2)}
    s_waitcnt lgkmcnt(0)
    s_barrier                                    ; BS5
    s_cmp_lg_u32 {s(S_W)}, 0
    s_cbranch_scc1 L_fin
    """)
    a(f"""
    v_and_b32 v2, 31, v1
    v_lshlrev_b32 v3, 2, v2
    v_add_u32 v3, {LS2 + P_RED2}, v3
    """)
    for w in range(8):
        a(f"ds_read_b32 {v(8+w)}, v3 offset:{128*w}")
    a(f"""
    v_and_b32 v4, 1, v2                          ; t
    v_lshrrev_b32 v5, 2, v2                      ; pi
    v_bfe_u32 v6, v2, 1, 1
    v_lshl_add_u32 v5, v5, 1, v6
    v_cmp_eq_u32 vcc, 0, v4
    v_mov_b32 v16, {s(S_L2)}
    v_mov_b32 v17, {s(S_L1)}
    v_mov_b32 v18, {s(S_R1)}
    v_mov_b32 v19, {s(S_R0)}
    v_mov_b32 v20, {s(S_G1)}
    v_mov_b32 v21, {s(S_G0)}
    v_cndmask_b32 v16, v16, v17, vcc             ; L
    v_cndmask_b32 v18, v18, v19, vcc             ; r
    v_cndmask_b32 v20, v20, v21, vcc
    v_and_b32 v17, 31, v16
    v_lshlrev_b32 v17, 17, v17                   ; RT*8*16384
    v_lshrrev_b32 v16, 5, v16
    v_lshl_add_u32 v17, v16, 9, v17              ; + a*512
    v_lshl_add_u32 v17, v5, 2, v17               ; + column*4
    s_lshr_b32 {s(S_T0)}, {s(S_A)}, 3            ; ct
    s_lshl_b32 {s(S_T0)}, {s(S_T0)}, 14
    s_and_b32 {s(S_T1)}, {s(S_A)}, 7
    s_lshl_b32 {s(S_T1)}, {s(S_T1)}, 6
    s_add_u32 {s(S_T0)}, {s(S_T0)}, {s(S_T1)}
    s_add_u32 {s(S_B)}, {s(S_T0)}, {WS_OB + OB_CBASE}
    """)
    def loadb():
        a(f"buffer_load_dword v22, v17, {s(S_WS,4)}, {s(S_B)} offen sc1")
        a(f"v_mov_b32 v23, 0")
    poll_valid(a, "L_base", loadb, [22, 23], 8, 44)
    a("s_waitcnt lgkmcnt(0)")
    for w in range(1, 8): a(f"v_add_f32 v8, v8, {v(8+w)}")
    a(f"""
    v_mul_f32 v18, {fbits(-LOG2E)}, v18
    v_exp_f32 v18, v18
    s_nop 0
    v_add_f32 v18, 1.0, v18
    v_rcp_f32 v18, v18
    s_nop 0
    v_fma_f32 v8, v8, v18, v22
    v_cvt_pk_bf16_f32 v8, v8, v8
    s_lshl_b32 {s(S_T0)}, {s(S_A)}, 5
    v_lshlrev_b32 v20, 11, v20
    v_lshl_add_u32 v20, v5, 1, v20
    v_cmp_gt_u32 vcc, 32, v1
    s_and_saveexec_b64 {s(S_EX,2)}, vcc
    buffer_store_short v8, v20, {s(S_OUT,4)}, {s(S_T0)} offen
    s_mov_b64 exec, {s(S_EX,2)}
    """)

def finish(a, o):
    a.label("L_fin")
    if o.stamps:
        a("s_waitcnt vmcnt(0)")
        stamp(a, o, NSTAMP-1)
        a(f"""
        s_waitcnt lgkmcnt(0)
        s_lshl_b32 {s(S_T0)}, s2, 3
        s_add_u32 {s(S_T0)}, {s(S_T0)}, {s(S_W)}
        s_lshl_b32 {s(S_T0)}, {s(S_T0)}, 7
        s_add_u32 {s(S_T0)}, {s(S_T0)}, {WS_TS}
        v_lshlrev_b32 v2, 2, v1
        v_mov_b32 v3, 0
        """)
        for i in range(2*NSTAMP):
            a(f"v_writelane_b32 v3, {s(S_STAMP+i)}, {i}")
        a(f"""
        v_cmp_gt_u32 vcc, {2*NSTAMP}, v1
        s_and_saveexec_b64 {s(S_EX,2)}, vcc
        buffer_store_dword v3, v2, {s(S_WS,4)}, {s(S_T0)} offen
        s_mov_b64 exec, {s(S_EX,2)}
        """)
    lab = a.newlabel("L_err")
    a(f"""
    s_cmp_eq_u32 {s(S_ERR)}, 0
    s_cbranch_scc1 L_end
    v_mov_b32 v2, 252
    v_mov_b32 v3, {s(S_ERR)}
    global_store_dword v2, v3, {s(S_DBG,2)}
    """)
    a.label("L_end")
    a("s_endpgm")

def build(o):
    a = Asm()
    a.label(KNAME)
    prologue(a, o)
    g1_compute(a, o)
    a("s_nop 7\ns_nop 7")
    g1_epilogue(a, o)
    a.label("L_g1_join")
    a("s_barrier")
    stamp(a, o, 3)
    if o.stop == 1:
        a(f"""
        v_lshlrev_b32 v2, 4, v0
        s_lshl_b32 {s(S_T0)}, {s(S_PID)}, 14
        s_add_u32 {s(S_T0)}, {s(S_T0)}, {WS_DBG}
        v_add_u32 v3, {A_Q}, v2
        ds_read_b128 v[4:7], v3
        ds_read_b128 v[8:11], v3 offset:8192
        s_waitcnt lgkmcnt(0)
        buffer_store_dwordx4 v[4:7], v2, {s(S_WS,4)}, {s(S_T0)} offen
        s_add_u32 {s(S_T0)}, {s(S_T0)}, 8192
        buffer_store_dwordx4 v[8:11], v2, {s(S_WS,4)}, {s(S_T0)} offen
        s_branch L_fin
        """)
    attention(a, o)
    if o.stop == 2:
        a("s_branch L_fin")
    gemm2_entry(a, o)
    gemm2_compute(a, o)
    a("s_nop 7\ns_nop 7")
    ln2_partial(a, o)
    a("s_barrier")
    a("s_barrier")
    stamp(a, o, 11)
    ln2_output(a, o)
    if o.stop == 3:
        out_deferred(a, o, all_rows=True)
        a("s_branch L_fin")
    a("s_waitcnt vmcnt(4)")
    unpack_wdown(a)
    a("s_barrier")
    stamp(a, o, 12)
    moe_read_sel(a)
    out_deferred(a, o)
    a.label("L_moe_all")
    moe_ffn(a, o)
    a("s_branch L_fin")
    gemm2_loader(a, o)
    a("s_barrier")
    a(f"s_cmp_lg_u32 {s(S_W)}, 4")
    a("s_cbranch_scc1 L_stage")
    ln2_stats_wave(a, o)
    a("s_barrier")
    stamp(a, o, 11)
    if o.stop == 3:
        a("s_branch L_fin")
    moe_select(a, o)
    a("s_branch L_bs3")
    a.label("L_stage")
    if o.stop != 3:
        moe_stage_weights(a, o)
    a("s_barrier")
    stamp(a, o, 11)
    if o.stop == 3:
        a("s_branch L_fin")
    a("s_waitcnt vmcnt(0)")
    a.label("L_bs3")
    unpack_wdown(a)
    a("s_barrier")
    stamp(a, o, 12)
    moe_read_sel(a)
    a("s_branch L_moe_all")
    g1_loader(a, o)
    finish(a, o)
    return a

HEADER = """; Kernarg layout: 0 A_x, 8 A_wqkv, 16 A_wo, 24 B_x, 32 B_w_r, 40 B_w_gate, 48 B_w_up, 56 B_w_down, 64 d_out, 72 d_debug, 80 d_ws
; @launch grid=(256,1,1) block=(512,1,1) lds=%d
.amdgcn_target "amdgcn-amd-amdhsa--gfx950"
.text
.globl %s
.p2align 8
.type %s,@function
"""
FOOTER = """
.section .rodata,"a"
.p2align 6
.amdhsa_kernel %s
  .amdhsa_next_free_vgpr 256
  .amdhsa_next_free_sgpr 102
  .amdhsa_accum_offset 256
  .amdhsa_group_segment_fixed_size 0
  .amdhsa_kernarg_size 88
  .amdhsa_user_sgpr_count 2
  .amdhsa_user_sgpr_kernarg_segment_ptr 1
  .amdhsa_system_sgpr_workgroup_id_x 1
.end_amdhsa_kernel
"""

def full_text(o):
    a = build(o)
    errs = check(a, [KNAME])
    return HEADER % (LDS_BYTES, KNAME, KNAME) + a.text() + FOOTER % KNAME, errs

if __name__ == "__main__":
    kw = {}
    for x in sys.argv[2:]:
        k, val = x.split("=")
        kw[k] = int(val)
    t, errs = full_text(Opt(**kw))
    open(sys.argv[1], "w").write(t)
    print("wrote", sys.argv[1], len(t), "bytes;", len(errs), "hazard reports")
```
